```python
import torch

def _softmax(x, axis=-1):
    return torch.softmax(x, dim=axis)
def _gelu(x):
    return torch.nn.functional.gelu(x, approximate="tanh")
def _silu(x):
    return torch.nn.functional.silu(x)
def _sigmoid(x):
    return torch.sigmoid(x)
def _layernorm(x, axis=-1, eps=1e-5):
    m = x.mean(dim=axis, keepdim=True)
    v = x.var(dim=axis, keepdim=True, unbiased=False)
    return (x - m) / torch.sqrt(v + eps)
def _scatter_add(tgt, idx, src, axis=0):
    return tgt.clone().index_add_(axis, idx, src)
def _segment_sum(src, seg, n):
    out = torch.zeros((n,) + src.shape[1:], dtype=src.dtype)
    return out.index_add_(0, seg, src)
def _pad(x, pw):
    flat = tuple(v for pair in reversed(pw) for v in pair)
    return torch.nn.functional.pad(x, flat)

kernel_name = 'standalone__grn__sampling'

def setup_inputs():

    _w = (lambda a: (lambda t: t.to(torch.bfloat16) if t.is_floating_point() else t)(torch.as_tensor(a)))
    B, S, D = 1024, 32, 576
    return {
        "x": _w((lambda *s: torch.randn(*s, dtype=torch.bfloat16) * 0.05)(B, S, D)),
        "g": _w((lambda *s: torch.randn(*s, dtype=torch.bfloat16) * 0.4)(D) * 0.1),
        "b": _w((lambda *s: torch.randn(*s, dtype=torch.bfloat16) * 0.1)(D) * 0.1),
    }

def reference(x, g, b):
    gx = torch.sqrt((x * x).sum(axis=-2, keepdims=True))
    nx = gx / (gx.mean(axis=-1, keepdims=True) + 1e-6)
    return g * (x * nx) + b + x
```

```python
import re

TRANS = ("v_exp_f32", "v_log_f32", "v_rcp_f32", "v_rsq_f32", "v_sqrt_f32", "v_sin_f32", "v_cos_f32", "v_rcp_iflag_f32")

def _regs(tok):
    tok = tok.strip()
    neg = tok.lstrip('-')
    if neg.startswith('abs(') or neg.startswith('|'):
        neg = neg.replace('abs(', '').replace(')', '').replace('|', '')
    tok = neg
    m = re.fullmatch(r'([vsa])(\d+)', tok)
    if m:
        return [(m.group(1), int(m.group(2)))]
    m = re.fullmatch(r'([vsa])\[(\d+):(\d+)\]', tok)
    if m:
        return [(m.group(1), i) for i in range(int(m.group(2)), int(m.group(3)) + 1)]
    if tok == 'vcc':
        return [('s', 106), ('s', 107)]
    if tok == 'vcc_lo':
        return [('s', 106)]
    if tok == 'vcc_hi':
        return [('s', 107)]
    if tok == 'exec':
        return [('s', 126), ('s', 127)]
    if tok == 'm0':
        return [('s', 124)]
    return []

class Ins:
    def __init__(self, text):
        self.text = text
        t = text.split(';')[0].strip()
        self.is_label = t.endswith(':')
        self.is_dir = t.startswith('.') and not self.is_label
        self.op = ''
        self.ops = []
        self.mods = ''
        if not t or self.is_label or self.is_dir:
            self.kind = 'none'
            return
        parts = t.split(None, 1)
        self.op = parts[0]
        rest = parts[1] if len(parts) > 1 else ''
        ops = []
        cur = ''
        depth = 0
        for ch in rest:
            if ch == '[':
                depth += 1
            if ch == ']':
                depth -= 1
            if ch == ',' and depth == 0:
                ops.append(cur.strip()); cur = ''
            else:
                cur += ch
        if cur.strip():
            ops.append(cur.strip())
        if ops:
            last = ops[-1].split(None, 1)
            ops[-1] = last[0]
            self.mods = last[1] if len(last) > 1 else ''
        self.ops = ops
        op = self.op
        base = re.sub(r'_(e32|e64|dpp|sdwa)$', '', op)
        self.base = base
        self.dpp = op.endswith('_dpp') or 'row_' in self.mods or 'quad_perm' in self.mods
        self.wr = []
        self.rd = []
        if op.startswith('v_'):
            self.kind = 'valu'
            if base.startswith('v_permlane') and 'swap' in base:
                self.wr = _regs(ops[0]) + _regs(ops[1]); self.rd = list(self.wr)
            elif base.startswith('v_cmp'):
                self.wr = _regs(ops[0])
                for o in ops[1:]:
                    self.rd += _regs(o)
                if base.startswith('v_cmpx'):
                    self.wr += _regs('exec')
            else:
                self.wr = _regs(ops[0])
                srcs = ops[1:]
                if base in ('v_add_co_u32', 'v_sub_co_u32', 'v_addc_co_u32', 'v_subb_co_u32'):
                    self.wr += _regs(ops[1]); srcs = ops[2:]
                for o in srcs:
                    self.rd += _regs(o)
                if base in ('v_fmac_f32', 'v_dot2c_f32_bf16', 'v_pk_fmac_f16', 'v_writelane_b32') or self.dpp:
                    self.rd += _regs(ops[0])
                if base == 'v_cndmask_b32' and len(ops) == 3:
                    self.rd += _regs('vcc')
            self.trans = base in TRANS
        elif op.startswith(('buffer_', 'global_', 'flat_')):
            self.kind = 'vmem'
            self.store = '_store' in op or 'atomic' in op
            if op.startswith('buffer_'):
                if 'lds' in self.mods.split() or (len(ops) == 3):
                    for o in ops: self.rd += _regs(o)
                elif self.store:
                    for o in ops: self.rd += _regs(o)
                    self.data = _regs(ops[0])
                else:
                    self.wr = _regs(ops[0])
                    for o in ops[1:]: self.rd += _regs(o)
            else:
                if self.store:
                    for o in ops: self.rd += _regs(o)
                    self.data = _regs(ops[1])
                elif 'load_lds' in op:
                    for o in ops: self.rd += _regs(o)
                else:
                    self.wr = _regs(ops[0])
                    for o in ops[1:]: self.rd += _regs(o)
            self.wide = self.store and ('x3' in op or 'x4' in op)
        elif op.startswith('ds_'):
            self.kind = 'ds'
            if 'read' in op or 'bpermute' in op or 'permute' in op or 'swizzle' in op:
                self.wr = _regs(ops[0])
                for o in ops[1:]: self.rd += _regs(o)
            else:
                for o in ops: self.rd += _regs(o)
        elif op.startswith('s_'):
            self.kind = 'salu'
            if op.startswith(('s_cmp', 's_cbranch', 's_branch', 's_waitcnt', 's_nop', 's_barrier', 's_endpgm', 's_setprio', 's_sleep', 's_bitcmp')):
                for o in ops: self.rd += _regs(o)
            else:
                self.wr = _regs(ops[0]) if ops else []
                for o in ops[1:]: self.rd += _regs(o)
                if 'saveexec' in op:
                    self.wr += _regs('exec')
        else:
            raise ValueError('unknown op ' + text)

    def states(self):
        if self.kind == 'none':
            return 0
        if self.op == 's_nop':
            return int(self.ops[0], 0) + 1
        return 1


def need(prod, cons):
    n = 0
    pw = set(prod.wr)
    if prod.kind == 'valu':
        vw = {r for r in pw if r[0] == 'v'}
        sw = {r for r in pw if r[0] == 's'}
        cr = set(cons.rd)
        if cons.kind == 'valu':
            if cons.dpp and (vw & cr):
                n = max(n, 2)
            if cons.base.startswith('v_permlane') and (vw & cr):
                n = max(n, 2)
            if prod.trans and not cons.trans and (vw & cr):
                n = max(n, 1)
            if prod.trans and cons.trans and (vw & cr):
                n = max(n, 1)
            if cons.base in ('v_readlane_b32', 'v_readfirstlane_b32') and (vw & cr):
                n = max(n, 1)
            if sw & cr:
                n = max(n, 2)
                if cons.base in ('v_readlane_b32', 'v_writelane_b32'):
                    n = max(n, 4)
            if cons.dpp and (sw & set(_regs('exec'))):
                n = max(n, 5)
            if ('sdwa' in prod.op or 'op_sel:' in prod.mods and not prod.base.startswith('v_pk')) and (vw & (cr | set(cons.wr))):
                n = max(n, 1)
        if cons.kind == 'vmem' and (sw & cr):
            n = max(n, 5)
    if prod.kind == 'vmem' and getattr(prod, 'wide', False):
        d = set(prod.data)
        if cons.kind == 'valu' and (d & set(cons.wr)):
            n = max(n, 2)
        elif cons.kind in ('vmem', 'ds') and (d & set(cons.wr)):
            n = max(n, 1)
    if prod.kind == 'salu' and ('s', 124) in pw:
        if cons.kind == 'vmem' and ('lds' in cons.mods.split() or 'load_lds' in cons.op):
            n = max(n, 1)
    return n


def fix_hazards(lines, verbose=False):
    out = []
    hist = []
    nins = 0
    for ln in lines:
        ins = Ins(ln)
        if ins.kind == 'none':
            out.append(ln)
            continue
        req = 0
        dist = 0
        for p in reversed(hist):
            k = need(p, ins)
            if k > dist:
                req = max(req, k - dist)
            dist += p.states()
            if dist >= 6:
                break
        if req > 0:
            nop = '    s_nop %d' % (req - 1)
            out.append(nop)
            hist.append(Ins(nop))
            nins += req
        out.append(ln)
        hist.append(ins)
    if verbose:
        print('; inserted wait states:', nins)
    return out


class A:
    def __init__(self):
        self.l = []

    def __call__(self, s):
        for x in s.split('\n'):
            x = x.strip()
            if not x:
                continue
            if x.endswith(':') or x.startswith('.') or x.startswith(';'):
                self.l.append(x)
            else:
                self.l.append('    ' + x)

    def text(self):
        return '\n'.join(fix_hazards(self.l)) + '\n'


HEADER = """; Kernarg layout (48 bytes, ptrs only, base s[0:1]):
"""

def wrap(body, launch, nvgpr, nsgpr, name='standalone__grn__sampling_kernel', comment=''):
    acc = (nvgpr + 3) // 4 * 4
    s = HEADER
    for c in comment.split('\n'):
        if c:
            s += '; ' + c + '\n'
    s += '; @launch ' + launch + '\n'
    s += '.amdgcn_target "amdgcn-amd-amdhsa--gfx950"\n.text\n'
    s += '.globl %s\n.p2align 8\n.type %s,@function\n%s:\n' % (name, name, name)
    s += body
    s += '.section .rodata,"a"\n.p2align 6\n.amdhsa_kernel %s\n' % name
    s += '  .amdhsa_next_free_vgpr %d\n  .amdhsa_next_free_sgpr %d\n  .amdhsa_accum_offset %d\n' % (nvgpr, nsgpr, acc)
    s += '  .amdhsa_group_segment_fixed_size 0\n  .amdhsa_kernarg_size 48\n  .amdhsa_user_sgpr_count 2\n'
    s += '  .amdhsa_user_sgpr_kernarg_segment_ptr 1\n  .amdhsa_system_sgpr_workgroup_id_x 1\n'
    s += '  .amdhsa_float_denorm_mode_32 3\n'
    s += '.end_amdhsa_kernel\n'
    return s
```

```python
import sys, argparse
from asmlib import A, wrap

def tsblock(a, sW, base=8):
    a('s_memrealtime s[56:57]')
    a('s_waitcnt vmcnt(0)')
    a('s_memrealtime s[58:59]')
    a('s_mov_b32 s46, 0x10000000')
    a('s_mov_b32 s47, 0x20000')
    a('s_mul_i32 s60, s2, 16')
    a('s_add_u32 s60, s60, s%d' % sW)
    a('s_lshl_b32 s60, s60, 5')
    a('s_waitcnt lgkmcnt(0)')
    a('s_getreg_b32 s61, hwreg(HW_REG_XCC_ID)')
    a('s_getreg_b32 s62, hwreg(HW_REG_HW_ID)')
    for i, s in enumerate([50, 52, 54, 56, 58, 61, 62, 51]):
        a('v_mov_b32 v%d, s%d' % (base + i, s))
    a('v_mov_b32 v%d, 0' % (base + 8))
    a('s_mov_b64 exec, 1')
    a('buffer_store_dwordx4 v[%d:%d], v%d, s[44:47], s60 offen' % (base, base + 3, base + 8))
    a('buffer_store_dwordx4 v[%d:%d], v%d, s[44:47], s60 offen offset:16' % (base + 4, base + 7, base + 8))

def gen(ldf='nt', stf='sc1', gbf='', ts=0, thr_even=1, thr_odd=0, thr_last=None, gate='early', mapping='contig', pf=True,
        NB=4, dot='dot2', pt='loaded', kpre=0, remap=True, nearly=2, bgo2=False, nogb=False, noinit=False, gate_odd=None, lastk=0, lastf='', xorder='s', sorder='q', pre=0, init2=False, init3=False, ramp=0):
    W = 3; SL = 3
    NWG = 1024 // NB
    NW = W * NB
    a = A()
    vOffX, vOffB, vOffG = 1, 2, 3
    vT = [4, 5, 6, 7]
    nxt = 8
    X = [[0]*4 for _ in range(SL)]
    for s in range(SL):
        for q in range(4):
            X[s][q] = nxt; nxt += 4
    ACC = []
    for s in range(SL):
        ACC.append(nxt); nxt += 8
    Bf = []
    for s in range(SL):
        Bf.append(nxt); nxt += 4
    BU = nxt; nxt += 8
    TMP = nxt; nxt += 8
    G = []
    for s in range(SL):
        G.append(nxt); nxt += 1
    if nxt % 2: nxt += 1
    vR = nxt; nxt += 2
    vF = nxt; nxt += 2
    vPF = nxt; nxt += 1
    nv = nxt
    sOff = [20, 21, 22, 23]
    sGB = 24; sW = 25; sM = 27
    sSelLo, sSelHi, sMask = 28, 29, 30
    a('s_cmp_ge_u32 s2, %d' % NWG)
    a('s_cbranch_scc1 L_end')
    if ts:
        a('s_memrealtime s[50:51]')
    if init2:
        a('v_readfirstlane_b32 s%d, v0' % sW)
        a('s_lshr_b32 s%d, s%d, 6' % (sW, sW))
        a('s_cmp_lg_u32 s%d, 4' % sW)
        a('s_cbranch_scc1 L_noz')
        a('v_and_b32 v%d, 15, v0' % vT[3])
        a('v_lshlrev_b32 v%d, 3, v%d' % (vT[3], vT[3]))
        a('v_mov_b32 v%d, 0' % vF)
        a('v_mov_b32 v%d, 0' % (vF + 1))
        a('ds_write_b64 v%d, v[%d:%d]' % (vT[3], vF, vF + 1))
        a('s_waitcnt lgkmcnt(0)')
        a('L_noz:')
    a('s_load_dwordx2 s[4:5], s[0:1], 0')
    a('s_load_dwordx2 s[12:13], s[0:1], 8')
    a('s_load_dwordx2 s[16:17], s[0:1], 16')
    a('s_load_dwordx2 s[8:9], s[0:1], 24')
    if ts:
        a('s_load_dwordx2 s[44:45], s[0:1], 40')
    if not init2:
        a('v_readfirstlane_b32 s%d, v0' % sW)
    a('v_and_b32 v%d, 7, v0' % vT[2])
    a('v_bfe_u32 v%d, v0, 3, 3' % vT[1])
    if not init2:
        a('s_lshr_b32 s%d, s%d, 6' % (sW, sW))
    else:
        a('s_cmp_lg_u32 s%d, 0' % sW)
    if pf:
        a('s_cbranch_scc1 L_nopf')
        a('s_getpc_b64 s[32:33]')
        a('L_pc:')
        a('v_lshlrev_b32 v%d, 7, v0' % vPF)
        a('v_min_u32 v%d, L_end-L_pc, v%d' % (vPF, vPF))
        a('global_load_dword v%d, v%d, s[32:33]' % (vPF, vPF))
        a('L_nopf:')
    if init2 and not init3:
        a('s_barrier')
    if init3:
        a('s_cmp_lt_u32 s%d, 4' % sW)
        a('s_cbranch_scc1 L_ib1')
        a('s_barrier')
        a('L_ib1:')
    a('v_lshlrev_b32 v%d, 4, v%d' % (vOffB, vT[2]))
    sP = 26
    if not remap:
        a('s_mul_i32 s%d, s%d, 43' % (sM, sW))
        a('v_mul_u32_u24 v%d, 1152, v%d' % (vOffX, vT[1]))
        a('s_lshr_b32 s%d, s%d, 7' % (sM, sM))
        a('v_add_u32 v%d, v%d, v%d' % (vOffX, vOffX, vOffB))
        a('s_mul_i32 s%d, s%d, 3' % (sP, sM))
        a('s_sub_u32 s%d, s%d, s%d' % (sP, sW, sP))
    else:
        a('s_lshr_b32 s%d, s%d, 2' % (sM, sW))
        a('v_mul_u32_u24 v%d, 1152, v%d' % (vOffX, vT[1]))
        a('s_and_b32 s%d, s%d, 3' % (sP, sW))
        a('v_add_u32 v%d, v%d, v%d' % (vOffX, vOffX, vOffB))
        a('s_cmp_eq_u32 s%d, 3' % sP)
        a('s_cselect_b32 s%d, s%d, s%d' % (sP, sM, sP))
        a('s_cselect_b32 s%d, 3, s%d' % (sM, sM))
    if mapping == 'contig':
        a('s_mul_i32 s%d, s2, %d' % (sOff[0], NB * 36864))
        a('s_mul_i32 s31, s%d, %d' % (sM, 36864))
    elif mapping == 'stride':
        a('s_mul_i32 s%d, s2, 36864' % sOff[0])
        a('s_mul_i32 s31, s%d, %d' % (sM, NWG * 36864))
    elif mapping == 'xcd':
        a('s_and_b32 s%d, s2, 7' % sOff[0])
        a('s_lshl_b32 s%d, s%d, 7' % (sOff[0], sOff[0]))
        a('s_lshr_b32 s31, s2, 3')
        a('s_add_u32 s%d, s%d, s31' % (sOff[0], sOff[0]))
        a('s_mul_i32 s%d, s%d, 36864' % (sOff[0], sOff[0]))
        a('s_mul_i32 s31, s%d, %d' % (sM, (NWG // 8) * 36864))
    if mapping == 'xcdc':
        a('s_and_b32 s%d, s2, 7' % sOff[0])
        a('s_lshl_b32 s%d, s%d, 7' % (sOff[0], sOff[0]))
        a('s_lshr_b32 s31, s2, 3')
        a('s_lshl_b32 s31, s31, 2')
        a('s_add_u32 s%d, s%d, s31' % (sOff[0], sOff[0]))
        a('s_mul_i32 s%d, s%d, 36864' % (sOff[0], sOff[0]))
        a('s_mul_i32 s31, s%d, 36864' % sM)
    a('s_mul_i32 s%d, s%d, 384' % (sGB, sP))
    a('s_add_u32 s%d, s%d, s31' % (sOff[0], sOff[0]))
    a('s_mov_b32 s6, 37748736')
    a('s_add_u32 s%d, s%d, s%d' % (sOff[0], sOff[0], sGB))
    a('s_mov_b32 s7, 0x20000')
    for q in range(1, 4):
        a('s_add_u32 s%d, s%d, %d' % (sOff[q], sOff[0], q * 9216))
    a('s_lshl_b32 s40, s%d, 5' % sM)
    a('s_lshl_b32 s41, s%d, 3' % sP)
    a('s_add_u32 s41, s41, s40')
    a('v_mov_b32 v%d, s41' % vT[3])
    if not init2:
        a('v_mov_b32 v%d, 0' % vF)
        a('v_mov_b32 v%d, 0' % (vF + 1))
        a('ds_write_b64 v%d, v[%d:%d]' % (vT[3], vF, vF + 1))
    a('s_waitcnt lgkmcnt(0)')
    if ts and pt == 'kwait':
        a('s_memrealtime s[52:53]')
    nl = 0
    xidx = {}
    for s in range(SL):
        for q in range(4):
            if nl == kpre and not noinit and not init2:
                a('s_barrier')
            r = X[s][q]
            a('buffer_load_dwordx4 v[%d:%d], v%d, s[4:7], s%d offen offset:%d %s' % (r, r+3, vOffX, sOff[q], s*128, ldf))
            xidx[(s, q)] = nl; nl += 1
    a('s_mov_b32 s14, 1152')
    a('s_mov_b32 s15, 0x20000')
    a('s_mov_b32 s18, 1152')
    a('s_mov_b32 s19, 0x20000')
    a('v_lshl_add_u32 v%d, v%d, 1, v%d' % (vOffG, vT[1], vOffB))
    gidx = {}; bidx = {}
    for s in range(SL):
        if nogb:
            gidx[s] = nl - 1; continue
        a('buffer_load_ushort v%d, v%d, s[12:15], s%d offen offset:%d %s' % (G[s], vOffG, sGB, s*128, gbf))
        gidx[s] = nl; nl += 1
    for s in range(SL):
        if nogb:
            bidx[s] = nl - 1; continue
        r = Bf[s]
        a('buffer_load_dwordx4 v[%d:%d], v%d, s[16:19], s%d offen offset:%d %s' % (r, r+3, vOffB, sGB, s*128, gbf))
        bidx[s] = nl; nl += 1
    if init3:
        a('s_cmp_ge_u32 s%d, 4' % sW)
        a('s_cbranch_scc1 L_ib2')
        a('s_barrier')
        a('L_ib2:')
    a('s_mov_b32 s10, 37748736')
    a('s_mov_b32 s11, 0x20000')
    if pre:
        if pre == 1:
            a('s_cmp_lg_u32 s%d, 0' % sGB)
            a('s_cbranch_scc1 L_nopre')
        a('s_mov_b64 exec, 1')
        a('buffer_load_dword v%d, v%d, s[8:11], s%d offen nt' % (vPF, vOffX, sOff[0]))
        a('s_mov_b64 exec, -1')
        if pre == 1:
            a('L_nopre:')
        PRE_EXTRA = True
    a('s_mov_b32 s%d, 0x05040100' % sSelLo)
    a('s_mov_b32 s%d, 0x07060302' % sSelHi)
    a('s_mov_b32 s%d, 0xffff0000' % sMask)
    if gate == 'early':
        a('s_cmp_lt_u32 s%d, %d' % (sM, nearly))
        a('s_cbranch_scc1 L_nogo1')
        a('s_barrier')
        a('L_nogo1:')
    if gate_odd is not None:
        a('s_getreg_b32 s42, hwreg(HW_REG_XCC_ID)')
        a('s_and_b32 s42, s42, 1')
        a('s_cmp_ge_u32 s%d, %d' % (sM, nearly))
        a('s_cselect_b32 s43, 1, 0')
        a('s_and_b32 s34, s42, s43')
        a('s_andn2_b32 s35, s43, s42')
        if gate_odd == 'early':
            a('s_cmp_eq_u32 s34, 0')
            a('s_cbranch_scc1 L_nogo0')
            a('s_barrier')
            a('L_nogo0:')
    state = {'first': True}
    def waitfor(i):
        a('s_waitcnt vmcnt(%d)' % (nl - 1 - i))
        if ts and pt == 'first' and state['first']:
            a('s_memrealtime s[52:53]')
        state['first'] = False
    def unpack8(dst, src):
        for k in range(4):
            a('v_lshlrev_b32 v%d, 16, v%d' % (dst + 2*k, src + k))
            a('v_and_b32 v%d, s%d, v%d' % (dst + 2*k + 1, sMask, src + k))
    for s in range(SL):
        if dot == 'dot2':
            for qp in range(2):
                q0, q1 = 2*qp, 2*qp+1
                waitfor(xidx[(s, q1)])
                if gate == 'x%d%d' % (s, q1):
                    if gate_odd is not None:
                        a('s_cmp_eq_u32 s35, 0')
                    else:
                        a('s_cmp_lt_u32 s%d, %d' % (sM, nearly))
                    a('s_cbranch_scc1 L_nogo1')
                    a('s_barrier')
                    a('L_nogo1:')
                if gate_odd == 'x%d%d' % (s, q1):
                    a('s_cmp_eq_u32 s34, 0')
                    a('s_cbranch_scc1 L_nogo0')
                    a('s_barrier')
                    a('L_nogo0:')
                for k in range(4):
                    a('v_perm_b32 v%d, v%d, v%d, s%d' % (TMP + 2*k, X[s][q1] + k, X[s][q0] + k, sSelLo))
                    a('v_perm_b32 v%d, v%d, v%d, s%d' % (TMP + 2*k + 1, X[s][q1] + k, X[s][q0] + k, sSelHi))
                for k in range(8):
                    src2 = '0' if qp == 0 else 'v%d' % (ACC[s] + k)
                    a('v_dot2_f32_bf16 v%d, v%d, v%d, %s' % (ACC[s] + k, TMP + k, TMP + k, src2))
        else:
            for q in range(4):
                waitfor(xidx[(s, q)])
                unpack8(TMP, X[s][q])
                for k in range(4):
                    f = TMP + 2*k; c = ACC[s] + 2*k
                    if q == 0:
                        a('v_pk_mul_f32 v[%d:%d], v[%d:%d], v[%d:%d]' % (c, c+1, f, f+1, f, f+1))
                    else:
                        a('v_pk_fma_f32 v[%d:%d], v[%d:%d], v[%d:%d], v[%d:%d]' % (c, c+1, f, f+1, f, f+1, c, c+1))
        if gate == 'loaded' and s == SL - 1:
            a('s_cmp_lt_u32 s%d, %d' % (sM, nearly))
            a('s_cbranch_scc1 L_nogo1')
            a('s_barrier')
            a('L_nogo1:')
        c = ACC[s]
        for j in range(4):
            a('v_permlane32_swap_b32 v%d, v%d' % (c + j, c + j + 4))
        for j in range(4):
            a('v_add_f32 v%d, v%d, v%d' % (c + j, c + j, c + j + 4))
        for j in range(2):
            a('v_permlane16_swap_b32 v%d, v%d' % (c + j, c + j + 2))
        for j in range(2):
            a('v_add_f32 v%d, v%d, v%d' % (c + j, c + j, c + j + 2))
        a('v_add_f32_dpp v%d, v%d, v%d row_ror:8 row_mask:0xf bank_mask:0x3' % (c + 2, c, c))
        a('v_add_f32_dpp v%d, v%d, v%d row_ror:8 row_mask:0xf bank_mask:0xc' % (c + 2, c + 1, c + 1))
        a('v_sqrt_f32 v%d, v%d' % (c, c + 2))
    if ts and pt == 'loaded':
        a('s_memrealtime s[52:53]')
    t = vT[0]
    a('v_add_f32 v%d, v%d, v%d' % (t, ACC[0], ACC[1]))
    a('v_add_f32 v%d, v%d, v%d' % (vF, t, ACC[2]))
    t = vF
    for sh in (8, 4, 2, 1):
        a('v_add_f32_dpp v%d, v%d, v%d row_ror:%d row_mask:0xf bank_mask:0xf' % (t, t, t, sh))
    a('v_add_f32_dpp v%d, v%d, v%d row_bcast:15 row_mask:0xa bank_mask:0xf' % (t, t, t))
    a('v_add_f32_dpp v%d, v%d, v%d row_bcast:31 row_mask:0xc bank_mask:0xf' % (t, t, t))
    a('v_mov_b32 v%d, 1' % (vF + 1))
    a('s_mov_b32 exec_lo, 0')
    a('s_mov_b32 exec_hi, 0x80000000')
    a('ds_write_b64 v%d, v[%d:%d]' % (vT[3], vF, vF + 1))
    a('s_mov_b64 exec, -1')
    waitfor(gidx[SL-1])
    for s in range(SL):
        c = ACC[s]
        a('v_lshlrev_b32 v%d, 16, v%d' % (G[s], G[s]))
        a('v_mul_f32 v%d, v%d, v%d' % (c + 1, G[s], c))
        a('v_mov_b32 v%d, v%d' % (c, c + 1))
        a('v_mov_b32_dpp v%d, v%d row_ror:8 row_mask:0xf bank_mask:0xc' % (c, c))
        a('v_mov_b32_dpp v%d, v%d row_ror:8 row_mask:0xf bank_mask:0x3' % (c + 1, c + 1))
        for j in range(2):
            a('v_mov_b32 v%d, v%d' % (c + j + 2, c + j))
        for j in range(2):
            a('v_permlane16_swap_b32 v%d, v%d' % (c + j, c + j + 2))
        for j in range(4):
            a('v_mov_b32 v%d, v%d' % (c + j + 4, c + j))
        for j in range(4):
            a('v_permlane32_swap_b32 v%d, v%d' % (c + j, c + j + 4))
    a('v_mov_b32 v%d, s40' % vT[1])
    a('L_poll:')
    a('ds_read_b128 v[%d:%d], v%d' % (TMP, TMP + 3, vT[1]))
    a('ds_read_b64 v[%d:%d], v%d offset:16' % (TMP + 4, TMP + 5, vT[1]))
    a('s_waitcnt lgkmcnt(0)')
    a('v_and_b32 v%d, v%d, v%d' % (vT[0], TMP + 1, TMP + 3))
    a('v_and_b32 v%d, v%d, v%d' % (vT[0], vT[0], TMP + 5))
    a('v_cmp_ne_u32 vcc, 0, v%d' % vT[0])
    a('s_cbranch_vccz L_poll')
    t = vT[0]
    a('v_add_f32 v%d, v%d, v%d' % (t, TMP, TMP + 2))
    a('v_add_f32 v%d, v%d, v%d' % (t, t, TMP + 4))
    a('v_mul_f32 v%d, 0x3ae38e39, v%d' % (t, t))
    a('v_add_f32 v%d, 0x358637bd, v%d' % (t, t))
    a('v_rcp_f32 v%d, v%d' % (vR, t))
    if ts:
        a('s_memrealtime s[54:55]')
    waitfor(bidx[SL-1])
    for s in range(SL):
        c = ACC[s]
        for k in range(4):
            a('v_pk_fma_f32 v[%d:%d], v[%d:%d], v[%d:%d], 1.0 op_sel_hi:[1,0,0]' % (c+2*k, c+2*k+1, c+2*k, c+2*k+1, vR, vR+1))
        unpack8(BU, Bf[s])
        for q in range(4):
            f = X[s][q]
            unpack8(TMP, f)
            for k in range(4):
                u = TMP + 2*k
                a('v_pk_fma_f32 v[%d:%d], v[%d:%d], v[%d:%d], v[%d:%d]' % (u, u+1, u, u+1, c+2*k, c+2*k+1, BU+2*k, BU+2*k+1))
            for k in range(4):
                a('v_cvt_pk_bf16_f32 v%d, v%d, v%d' % (f + k, TMP + 2*k, TMP + 2*k + 1))
    if gate != 'none':
        if gate == 'all':
            a('s_barrier')
        else:
            if bgo2:
                a('s_barrier')
            else:
                a('s_cmp_ge_u32 s%d, %d' % (sM, nearly))
                a('s_cbranch_scc1 L_nogo2')
                a('s_barrier')
                a('L_nogo2:')
    if ts and pt == 'go':
        a('s_memrealtime s[52:53]')
    order = [(s, q) for q in range(4) for s in range(SL)] if sorder == 'q' else [(s, q) for s in range(SL) for q in range(4)]
    def stores(k, lab):
        for j, (s, q) in enumerate(order):
            if k and j >= k:
                a('s_waitcnt vmcnt(%d)' % (k - 1))
            elif ramp and 1 <= j <= ramp:
                a('s_waitcnt vmcnt(0)')
            f = X[s][q]
            fl = lastf if j >= len(order) - lastk else stf
            a('buffer_store_dwordx4 v[%d:%d], v%d, s[8:11], s%d offen offset:%d %s' % (f, f+3, vOffX, sOff[q], s*128, fl))
    if thr_even == thr_odd and thr_last is None:
        stores(thr_even, 'a')
    else:
        a('s_getreg_b32 s42, hwreg(HW_REG_XCC_ID)')
        a('s_bitcmp1_b32 s42, 0')
        a('s_cbranch_scc1 L_odd')
        if thr_last is not None:
            a('s_cmp_ge_u32 s%d, %d' % (sM, nearly))
            a('s_cbranch_scc1 L_last')
        stores(thr_even, 'e')
        a('s_branch L_fin')
        if thr_last is not None:
            a('L_last:')
            stores(thr_last, 'l')
            a('s_branch L_fin')
        a('L_odd:')
        stores(thr_odd, 'o')
        a('L_fin:')
    if ts:
        tsblock(a, sW)
    a('L_end:')
    a('s_endpgm')
    launch = 'grid=(%d,1,1) block=(%d,1,1) lds=%d' % (NWG, NW * 64, 32 * NB)
    return wrap(a.text(), launch, nv, 72 if ts else 48,
                comment='GRN v2: 3 waves/batch, %d batches/WG, ld="%s" st="%s" thr=%s/%s/%s gate=%s map=%s' % (NB, ldf, stf, thr_even, thr_odd, thr_last, gate, mapping))

if __name__ == '__main__':
    p = argparse.ArgumentParser()
    p.add_argument('--ld', default='nt'); p.add_argument('--st', default='sc1'); p.add_argument('--gb', default='')
    p.add_argument('--ts', type=int, default=0); p.add_argument('--te', type=int, default=1); p.add_argument('--to', type=int, default=0)
    p.add_argument('--tl', type=int, default=None); p.add_argument('--gate', default='early'); p.add_argument('--map', default='contig')
    p.add_argument('--nopf', action='store_true'); p.add_argument('--NB', type=int, default=4); p.add_argument('--dot', default='dot2')
    p.add_argument('--pt', default='loaded')
    p.add_argument('--kpre', type=int, default=0)
    p.add_argument('--noremap', action='store_true'); p.add_argument('--nearly', type=int, default=2); p.add_argument('--bgo2', action='store_true')
    p.add_argument('--nogb', action='store_true'); p.add_argument('--noinit', action='store_true')
    p.add_argument('--godd', default=None)
    p.add_argument('--lastk', type=int, default=0); p.add_argument('--lastf', default=''); p.add_argument('--sorder', default='q')
    p.add_argument('--pre', type=int, default=0)
    p.add_argument('--init2', action='store_true')
    p.add_argument('--init3', action='store_true')
    p.add_argument('--ramp', type=int, default=0)
    p.add_argument('-o', default='-')
    x = p.parse_args()
    x.ld = x.ld.replace('_', ' '); x.st = x.st.replace('_', ' '); x.lastf = x.lastf.replace('_', ' ')
    s = gen(x.ld, x.st, x.gb, x.ts, x.te, x.to, x.tl, x.gate, x.map, not x.nopf, x.NB, x.dot, x.pt, x.kpre, not x.noremap, x.nearly, x.bgo2, x.nogb, x.noinit, x.godd, x.lastk, x.lastf, 's', x.sorder, x.pre, x.init2 or x.init3, x.init3, x.ramp)
    open(x.o, 'w').write(s) if x.o != '-' else print(s)
```

```python
import sys, argparse
from asmlib import A, wrap
from gen2 import tsblock

def gen(ldf='nt', stf='sc1', gbf='', ts=0, gate='x13', gate_odd='early', nearly=2, pf=True, pt='loaded', sorder='q',
        gbpos=4, name='standalone__grn__sampling_kernel'):
    SL = 3; NB = 4; NWG = 256; NW = 12
    a = A()
    vOffX, vOffB, vOffG = 1, 2, 3
    vT = [4, 5, 6, 7]
    nxt = 8
    X = [[0]*4 for _ in range(SL)]
    for s in range(SL):
        for q in range(4):
            X[s][q] = nxt; nxt += 8
    ACC = []
    for s in range(SL):
        ACC.append(nxt); nxt += 8
    Bf = []
    for s in range(SL):
        Bf.append(nxt); nxt += 8
    G = []
    for s in range(SL):
        G.append(nxt); nxt += 1
    if nxt % 2: nxt += 1
    vR = nxt; nxt += 2
    vF = nxt; nxt += 2
    TMP = nxt; nxt += 6
    nv = nxt
    vPF = 0
    sOff = [20, 21, 22, 23]
    sGB = 24; sW = 25; sP = 26; sM = 27; sMask = 30
    a('s_cmp_ge_u32 s2, %d' % NWG)
    a('s_cbranch_scc1 L_end')
    if ts:
        a('s_memrealtime s[50:51]')
    a('v_readfirstlane_b32 s%d, v0' % sW)
    a('s_lshr_b32 s%d, s%d, 6' % (sW, sW))
    a('s_cmp_lg_u32 s%d, 4' % sW)
    a('s_cbranch_scc1 L_noz')
    a('v_and_b32 v%d, 15, v0' % vT[3])
    a('v_lshlrev_b32 v%d, 3, v%d' % (vT[3], vT[3]))
    a('v_mov_b32 v%d, 0' % vF)
    a('v_mov_b32 v%d, 0' % (vF + 1))
    a('ds_write_b64 v%d, v[%d:%d]' % (vT[3], vF, vF + 1))
    a('s_waitcnt lgkmcnt(0)')
    a('L_noz:')
    a('s_load_dwordx2 s[4:5], s[0:1], 0')
    a('s_load_dwordx2 s[12:13], s[0:1], 8')
    a('s_load_dwordx2 s[16:17], s[0:1], 16')
    a('s_load_dwordx2 s[8:9], s[0:1], 24')
    if ts:
        a('s_load_dwordx2 s[44:45], s[0:1], 40')
    a('v_and_b32 v%d, 7, v0' % vT[2])
    a('v_bfe_u32 v%d, v0, 3, 3' % vT[1])
    a('v_lshlrev_b32 v%d, 4, v%d' % (vOffB, vT[2]))
    a('s_mul_i32 s%d, s%d, 43' % (sM, sW))
    a('v_mul_u32_u24 v%d, 1152, v%d' % (vOffX, vT[1]))
    a('s_lshr_b32 s%d, s%d, 7' % (sM, sM))
    a('v_add_u32 v%d, v%d, v%d' % (vOffX, vOffX, vOffB))
    a('s_mul_i32 s%d, s%d, 3' % (sP, sM))
    a('v_lshl_add_u32 v%d, v%d, 1, v%d' % (vOffG, vT[1], vOffB))
    a('s_sub_u32 s%d, s%d, s%d' % (sP, sW, sP))
    if pf:
        a('s_cmp_lg_u32 s%d, 0' % sW)
        a('s_cbranch_scc1 L_nopf')
        a('s_getpc_b64 s[32:33]')
        a('L_pc:')
        a('v_lshlrev_b32 v%d, 7, v0' % vPF)
        a('v_min_u32 v%d, L_end-L_pc, v%d' % (vPF, vPF))
        a('global_load_dword v%d, v%d, s[32:33]' % (vPF, vPF))
        a('L_nopf:')
    a('s_cmp_lt_u32 s%d, 4' % sW)
    a('s_cbranch_scc1 L_ib1')
    a('s_barrier')
    a('L_ib1:')
    a('s_and_b32 s%d, s2, 7' % sOff[0])
    a('s_lshl_b32 s%d, s%d, 7' % (sOff[0], sOff[0]))
    a('s_lshr_b32 s31, s2, 3')
    a('s_add_u32 s%d, s%d, s31' % (sOff[0], sOff[0]))
    a('s_lshl_b32 s31, s%d, 5' % sM)
    a('s_add_u32 s%d, s%d, s31' % (sOff[0], sOff[0]))
    a('s_mul_i32 s%d, s%d, 36864' % (sOff[0], sOff[0]))
    a('s_mul_i32 s%d, s%d, 384' % (sGB, sP))
    a('s_mov_b32 s6, 37748736')
    a('s_add_u32 s%d, s%d, s%d' % (sOff[0], sOff[0], sGB))
    a('s_mov_b32 s7, 0x20000')
    for q in range(1, 4):
        a('s_add_u32 s%d, s%d, %d' % (sOff[q], sOff[0], q * 9216))
    a('s_mov_b32 s14, 1152')
    a('s_mov_b32 s15, 0x20000')
    a('s_mov_b32 s18, 1152')
    a('s_mov_b32 s19, 0x20000')
    a('s_waitcnt lgkmcnt(0)')
    if ts and pt == 'kwait':
        a('s_memrealtime s[52:53]')
    nl = 0
    xidx = {}; gidx = {}; bidx = {}
    def gbloads():
        nonlocal nl
        for s in range(SL):
            a('buffer_load_ushort v%d, v%d, s[12:15], s%d offen offset:%d %s' % (G[s], vOffG, sGB, s*128, gbf))
            gidx[s] = nl; nl += 1
        for s in range(SL):
            r = Bf[s] + 4
            a('buffer_load_dwordx4 v[%d:%d], v%d, s[16:19], s%d offen offset:%d %s' % (r, r+3, vOffB, sGB, s*128, gbf))
            bidx[s] = nl; nl += 1
    nx = 0
    for s in range(SL):
        for q in range(4):
            if nx == gbpos:
                gbloads()
            r = X[s][q] + 4
            a('buffer_load_dwordx4 v[%d:%d], v%d, s[4:7], s%d offen offset:%d %s' % (r, r+3, vOffX, sOff[q], s*128, ldf))
            xidx[(s, q)] = nl; nl += 1; nx += 1
    if gbpos >= 12:
        gbloads()
    a('s_cmp_ge_u32 s%d, 4' % sW)
    a('s_cbranch_scc1 L_ib2')
    a('s_barrier')
    a('L_ib2:')
    a('s_mov_b32 s10, 37748736')
    a('s_mov_b32 s11, 0x20000')
    a('s_mov_b32 s%d, 0xffff0000' % sMask)
    a('s_lshl_b32 s40, s%d, 5' % sM)
    a('s_lshl_b32 s41, s%d, 3' % sP)
    a('s_add_u32 s41, s41, s40')
    a('v_mov_b32 v%d, s41' % vT[3])
    a('v_mov_b32 v%d, s40' % vT[1])
    a('v_mov_b32 v%d, 1' % (vF + 1))
    a('s_getreg_b32 s42, hwreg(HW_REG_XCC_ID)')
    a('s_and_b32 s42, s42, 1')
    a('s_cmp_ge_u32 s%d, %d' % (sM, nearly))
    a('s_cselect_b32 s43, 1, 0')
    a('s_and_b32 s34, s42, s43')
    a('s_andn2_b32 s35, s43, s42')
    def gatebar(reg, lab):
        a('s_cmp_eq_u32 s%d, 0' % reg)
        a('s_cbranch_scc1 %s' % lab)
        a('s_barrier')
        a('%s:' % lab)
    if gate_odd == 'early':
        gatebar(34, 'L_g0')
    if gate == 'early':
        gatebar(35, 'L_g1')
    state = {'first': True}
    def waitfor(i):
        a('s_waitcnt vmcnt(%d)' % (nl - 1 - i))
        if ts and pt == 'first' and state['first']:
            a('s_memrealtime s[52:53]')
        state['first'] = False
    def unpack8(dst, src):
        for k in range(4):
            a('v_lshlrev_b32 v%d, 16, v%d' % (dst + 2*k, src + k))
            a('v_and_b32 v%d, s%d, v%d' % (dst + 2*k + 1, sMask, src + k))
    def bcast(s):
        c = ACC[s]
        a('v_lshlrev_b32 v%d, 16, v%d' % (G[s], G[s]))
        a('v_mul_f32 v%d, v%d, v%d' % (c + 1, G[s], c))
        a('v_mov_b32 v%d, v%d' % (c, c + 1))
        a('v_mov_b32_dpp v%d, v%d row_ror:8 row_mask:0xf bank_mask:0xc' % (c, c))
        a('v_mov_b32_dpp v%d, v%d row_ror:8 row_mask:0xf bank_mask:0x3' % (c + 1, c + 1))
        for j in range(2):
            a('v_mov_b32 v%d, v%d' % (c + j + 2, c + j))
        for j in range(2):
            a('v_permlane16_swap_b32 v%d, v%d' % (c + j, c + j + 2))
        for j in range(4):
            a('v_mov_b32 v%d, v%d' % (c + j + 4, c + j))
        for j in range(4):
            a('v_permlane32_swap_b32 v%d, v%d' % (c + j, c + j + 4))
    gsum = vF
    gb_done = False
    for s in range(SL):
        for q in range(4):
            waitfor(xidx[(s, q)])
            if gate == 'x%d%d' % (s, q):
                gatebar(35, 'L_g1')
            if gate_odd == 'x%d%d' % (s, q):
                gatebar(34, 'L_g0')
            unpack8(X[s][q], X[s][q] + 4)
            for k in range(4):
                f = X[s][q] + 2*k; c = ACC[s] + 2*k
                if q == 0:
                    a('v_pk_mul_f32 v[%d:%d], v[%d:%d], v[%d:%d]' % (c, c+1, f, f+1, f, f+1))
                else:
                    a('v_pk_fma_f32 v[%d:%d], v[%d:%d], v[%d:%d], v[%d:%d]' % (c, c+1, f, f+1, f, f+1, c, c+1))
        c = ACC[s]
        for j in range(4):
            a('v_permlane32_swap_b32 v%d, v%d' % (c + j, c + j + 4))
        for j in range(4):
            a('v_add_f32 v%d, v%d, v%d' % (c + j, c + j, c + j + 4))
        for j in range(2):
            a('v_permlane16_swap_b32 v%d, v%d' % (c + j, c + j + 2))
        for j in range(2):
            a('v_add_f32 v%d, v%d, v%d' % (c + j, c + j, c + j + 2))
        a('v_add_f32_dpp v%d, v%d, v%d row_ror:8 row_mask:0xf bank_mask:0x3' % (c + 2, c, c))
        a('v_add_f32_dpp v%d, v%d, v%d row_ror:8 row_mask:0xf bank_mask:0xc' % (c + 2, c + 1, c + 1))
        a('v_sqrt_f32 v%d, v%d' % (c, c + 2))
        if s == 0:
            a('v_mov_b32 v%d, v%d' % (gsum, c))
        else:
            a('v_add_f32 v%d, v%d, v%d' % (gsum, gsum, c))
        if s < SL - 1:
            if bidx[SL-1] < xidx[(s + 1, 0)]:
                if not gb_done:
                    waitfor(bidx[SL-1])
                    for u in range(SL):
                        unpack8(Bf[u], Bf[u] + 4)
                    gb_done = True
                bcast(s)
    if ts and pt == 'loaded':
        a('s_memrealtime s[52:53]')
    t = gsum
    for sh in (8, 4, 2, 1):
        a('v_add_f32_dpp v%d, v%d, v%d row_ror:%d row_mask:0xf bank_mask:0xf' % (t, t, t, sh))
    a('v_add_f32_dpp v%d, v%d, v%d row_bcast:15 row_mask:0xa bank_mask:0xf' % (t, t, t))
    a('v_add_f32_dpp v%d, v%d, v%d row_bcast:31 row_mask:0xc bank_mask:0xf' % (t, t, t))
    a('s_mov_b32 exec_lo, 0')
    a('s_mov_b32 exec_hi, 0x80000000')
    a('ds_write_b64 v%d, v[%d:%d]' % (vT[3], vF, vF + 1))
    a('s_mov_b64 exec, -1')
    if gb_done:
        bcast(SL - 1)
    else:
        waitfor(bidx[SL-1])
        for s in range(SL):
            bcast(s)
        for u in range(SL):
            unpack8(Bf[u], Bf[u] + 4)
    a('L_poll:')
    a('ds_read_b128 v[%d:%d], v%d' % (TMP, TMP + 3, vT[1]))
    a('ds_read_b64 v[%d:%d], v%d offset:16' % (TMP + 4, TMP + 5, vT[1]))
    a('s_waitcnt lgkmcnt(0)')
    a('v_and_b32 v%d, v%d, v%d' % (vT[0], TMP + 1, TMP + 3))
    a('v_and_b32 v%d, v%d, v%d' % (vT[0], vT[0], TMP + 5))
    a('v_cmp_ne_u32 vcc, 0, v%d' % vT[0])
    a('s_cbranch_vccz L_poll')
    t = vT[0]
    a('v_add_f32 v%d, v%d, v%d' % (t, TMP, TMP + 2))
    a('v_add_f32 v%d, v%d, v%d' % (t, t, TMP + 4))
    a('v_mul_f32 v%d, 0x3ae38e39, v%d' % (t, t))
    a('v_add_f32 v%d, 0x358637bd, v%d' % (t, t))
    a('v_rcp_f32 v%d, v%d' % (vR, t))
    if ts:
        a('s_memrealtime s[54:55]')
    for s in range(SL):
        c = ACC[s]
        for k in range(4):
            a('v_pk_fma_f32 v[%d:%d], v[%d:%d], v[%d:%d], 1.0 op_sel_hi:[1,0,0]' % (c+2*k, c+2*k+1, c+2*k, c+2*k+1, vR, vR+1))
    a('s_cmp_lg_u32 s43, 0')
    a('s_cbranch_scc1 L_g2')
    a('s_barrier')
    a('L_g2:')
    if ts and pt == 'go':
        a('s_memrealtime s[52:53]')
    order = [(s, q) for q in range(4) for s in range(SL)] if sorder == 'q' else [(s, q) for s in range(SL) for q in range(4)]
    for (s, q) in order:
        f = X[s][q]; c = ACC[s]; bb = Bf[s]
        for k in range(4):
            a('v_pk_fma_f32 v[%d:%d], v[%d:%d], v[%d:%d], v[%d:%d]' % (f+2*k, f+2*k+1, f+2*k, f+2*k+1, c+2*k, c+2*k+1, bb+2*k, bb+2*k+1))
        for k in range(4):
            a('v_cvt_pk_bf16_f32 v%d, v%d, v%d' % (f + k, f + 2*k, f + 2*k + 1))
        a('buffer_store_dwordx4 v[%d:%d], v%d, s[8:11], s%d offen offset:%d %s' % (f, f+3, vOffX, sOff[q], s*128, stf))
    if ts:
        tsblock(a, sW)
    a('L_end:')
    a('s_endpgm')
    launch = 'grid=(%d,1,1) block=(%d,1,1) lds=%d' % (NWG, NW * 64, 32 * NB)
    return wrap(a.text(), launch, nv, 72 if ts else 48,
                comment='GRN v3: 3 waves/batch, 4 batches/WG, f32-resident x, ld="%s" st="%s" gate=%s/%s' % (ldf, stf, gate, gate_odd))

if __name__ == '__main__':
    p = argparse.ArgumentParser()
    p.add_argument('--ld', default='nt'); p.add_argument('--st', default='sc1'); p.add_argument('--gb', default='')
    p.add_argument('--ts', type=int, default=0); p.add_argument('--gate', default='x13'); p.add_argument('--godd', default='early')
    p.add_argument('--nearly', type=int, default=2); p.add_argument('--nopf', action='store_true'); p.add_argument('--pt', default='loaded')
    p.add_argument('--sorder', default='q'); p.add_argument('--gbpos', type=int, default=4)
    p.add_argument('-o', default='-')
    x = p.parse_args()
    x.ld = x.ld.replace('_', ' '); x.st = x.st.replace('_', ' ')
    s = gen(x.ld, x.st, x.gb, x.ts, x.gate, x.godd, x.nearly, not x.nopf, x.pt, x.sorder, x.gbpos)
    open(x.o, 'w').write(s) if x.o != '-' else print(s)
```

```python
import sys, argparse
from asmlib import A, wrap
from spin import spin_head, spin_tail

def tsblock(a, sW, base=8):
    a('s_memrealtime s[56:57]')
    a('s_waitcnt vmcnt(0)')
    a('s_memrealtime s[58:59]')
    a('s_mov_b32 s46, 0x10000000')
    a('s_mov_b32 s47, 0x20000')
    a('s_mul_i32 s60, s2, 16')
    a('s_add_u32 s60, s60, s%d' % sW)
    a('s_lshl_b32 s60, s60, 5')
    a('s_waitcnt lgkmcnt(0)')
    a('s_getreg_b32 s61, hwreg(HW_REG_XCC_ID)')
    a('s_getreg_b32 s62, hwreg(HW_REG_HW_ID)')
    for i, s in enumerate([50, 52, 54, 56, 58, 61, 62, 51]):
        a('v_mov_b32 v%d, s%d' % (base + i, s))
    a('v_mov_b32 v%d, 0' % (base + 8))
    a('s_mov_b64 exec, 1')
    a('buffer_store_dwordx4 v[%d:%d], v%d, s[44:47], s60 offen' % (base, base + 3, base + 8))
    a('buffer_store_dwordx4 v[%d:%d], v%d, s[44:47], s60 offen offset:16' % (base + 4, base + 7, base + 8))

def gen(ldf='nt', stf='sc1', gbf='', ts=0, thr_even=1, thr_odd=0, thr_last=None, gate='early', mapping='contig', pf=True,
        NB=4, dot='dot2', pt='loaded', kpre=0, remap=True, nearly=2, bgo2=False, nogb=False, noinit=False, gate_odd=None, lastk=0, lastf='', xorder='s', sorder='q', pre=0, init2=False, init3=False, ramp=0):
    W = 3; SL = 3
    NWG = 1024 // NB
    NW = W * NB
    a = A()
    vOffX, vOffB, vOffG = 1, 2, 3
    vT = [4, 5, 6, 7]
    nxt = 8
    X = [[0]*4 for _ in range(SL)]
    for s in range(SL):
        for q in range(4):
            X[s][q] = nxt; nxt += 4
    ACC = []
    for s in range(SL):
        ACC.append(nxt); nxt += 8
    Bf = []
    for s in range(SL):
        Bf.append(nxt); nxt += 4
    BU = nxt; nxt += 8
    TMP = nxt; nxt += 8
    G = []
    for s in range(SL):
        G.append(nxt); nxt += 1
    if nxt % 2: nxt += 1
    vR = nxt; nxt += 2
    vF = nxt; nxt += 2
    vPF = nxt; nxt += 1
    nv = nxt
    sOff = [20, 21, 22, 23]
    sGB = 24; sW = 25; sM = 27
    sSelLo, sSelHi, sMask = 28, 29, 30
    a('s_cmp_ge_u32 s2, %d' % NWG)
    a('s_cbranch_scc1 L_end')
    if ts:
        a('s_memrealtime s[50:51]')
    if ts == 3:
        spin_head(a)
    if init2:
        a('v_readfirstlane_b32 s%d, v0' % sW)
        a('s_lshr_b32 s%d, s%d, 6' % (sW, sW))
        a('s_cmp_lg_u32 s%d, 4' % sW)
        a('s_cbranch_scc1 L_noz')
        a('v_and_b32 v%d, 15, v0' % vT[3])
        a('v_lshlrev_b32 v%d, 3, v%d' % (vT[3], vT[3]))
        a('v_mov_b32 v%d, 0' % vF)
        a('v_mov_b32 v%d, 0' % (vF + 1))
        a('ds_write_b64 v%d, v[%d:%d]' % (vT[3], vF, vF + 1))
        a('s_waitcnt lgkmcnt(0)')
        a('L_noz:')
    a('s_load_dwordx2 s[4:5], s[0:1], 0')
    a('s_load_dwordx2 s[12:13], s[0:1], 8')
    a('s_load_dwordx2 s[16:17], s[0:1], 16')
    a('s_load_dwordx2 s[8:9], s[0:1], 24')
    if ts:
        a('s_load_dwordx2 s[44:45], s[0:1], 40')
    if not init2:
        a('v_readfirstlane_b32 s%d, v0' % sW)
    a('v_and_b32 v%d, 7, v0' % vT[2])
    a('v_bfe_u32 v%d, v0, 3, 3' % vT[1])
    if not init2:
        a('s_lshr_b32 s%d, s%d, 6' % (sW, sW))
    else:
        a('s_cmp_lg_u32 s%d, 0' % sW)
    if pf:
        a('s_cbranch_scc1 L_nopf')
        a('s_getpc_b64 s[32:33]')
        a('L_pc:')
        a('v_lshlrev_b32 v%d, 7, v0' % vPF)
        a('v_min_u32 v%d, L_end-L_pc, v%d' % (vPF, vPF))
        a('global_load_dword v%d, v%d, s[32:33]' % (vPF, vPF))
        a('L_nopf:')
    if init2 and not init3:
        a('s_barrier')
    if init3:
        a('s_cmp_lt_u32 s%d, 4' % sW)
        a('s_cbranch_scc1 L_ib1')
        a('s_barrier')
        a('L_ib1:')
    a('v_lshlrev_b32 v%d, 4, v%d' % (vOffB, vT[2]))
    sP = 26
    if not remap:
        a('s_mul_i32 s%d, s%d, 43' % (sM, sW))
        a('v_mul_u32_u24 v%d, 1152, v%d' % (vOffX, vT[1]))
        a('s_lshr_b32 s%d, s%d, 7' % (sM, sM))
        a('v_add_u32 v%d, v%d, v%d' % (vOffX, vOffX, vOffB))
        a('s_mul_i32 s%d, s%d, 3' % (sP, sM))
        a('s_sub_u32 s%d, s%d, s%d' % (sP, sW, sP))
    else:
        a('s_lshr_b32 s%d, s%d, 2' % (sM, sW))
        a('v_mul_u32_u24 v%d, 1152, v%d' % (vOffX, vT[1]))
        a('s_and_b32 s%d, s%d, 3' % (sP, sW))
        a('v_add_u32 v%d, v%d, v%d' % (vOffX, vOffX, vOffB))
        a('s_cmp_eq_u32 s%d, 3' % sP)
        a('s_cselect_b32 s%d, s%d, s%d' % (sP, sM, sP))
        a('s_cselect_b32 s%d, 3, s%d' % (sM, sM))
    if mapping == 'contig':
        a('s_mul_i32 s%d, s2, %d' % (sOff[0], NB * 36864))
        a('s_mul_i32 s31, s%d, %d' % (sM, 36864))
    elif mapping == 'stride':
        a('s_mul_i32 s%d, s2, 36864' % sOff[0])
        a('s_mul_i32 s31, s%d, %d' % (sM, NWG * 36864))
    elif mapping == 'xcd':
        a('s_and_b32 s%d, s2, 7' % sOff[0])
        a('s_lshl_b32 s%d, s%d, 7' % (sOff[0], sOff[0]))
        a('s_lshr_b32 s31, s2, 3')
        a('s_add_u32 s%d, s%d, s31' % (sOff[0], sOff[0]))
        a('s_mul_i32 s%d, s%d, 36864' % (sOff[0], sOff[0]))
        a('s_mul_i32 s31, s%d, %d' % (sM, (NWG // 8) * 36864))
    if mapping == 'xcdc':
        a('s_and_b32 s%d, s2, 7' % sOff[0])
        a('s_lshl_b32 s%d, s%d, 7' % (sOff[0], sOff[0]))
        a('s_lshr_b32 s31, s2, 3')
        a('s_lshl_b32 s31, s31, 2')
        a('s_add_u32 s%d, s%d, s31' % (sOff[0], sOff[0]))
        a('s_mul_i32 s%d, s%d, 36864' % (sOff[0], sOff[0]))
        a('s_mul_i32 s31, s%d, 36864' % sM)
    a('s_mul_i32 s%d, s%d, 384' % (sGB, sP))
    a('s_add_u32 s%d, s%d, s31' % (sOff[0], sOff[0]))
    a('s_mov_b32 s6, 37748736')
    a('s_add_u32 s%d, s%d, s%d' % (sOff[0], sOff[0], sGB))
    a('s_mov_b32 s7, 0x20000')
    for q in range(1, 4):
        a('s_add_u32 s%d, s%d, %d' % (sOff[q], sOff[0], q * 9216))
    a('s_lshl_b32 s40, s%d, 5' % sM)
    a('s_lshl_b32 s41, s%d, 3' % sP)
    a('s_add_u32 s41, s41, s40')
    a('v_mov_b32 v%d, s41' % vT[3])
    if not init2:
        a('v_mov_b32 v%d, 0' % vF)
        a('v_mov_b32 v%d, 0' % (vF + 1))
        a('ds_write_b64 v%d, v[%d:%d]' % (vT[3], vF, vF + 1))
    a('s_waitcnt lgkmcnt(0)')
    if ts and pt == 'kwait':
        a('s_memrealtime s[52:53]')
    nl = 0
    xidx = {}
    for s in range(SL):
        for q in range(4):
            if nl == kpre and not noinit and not init2:
                a('s_barrier')
            r = X[s][q]
            a('buffer_load_dwordx4 v[%d:%d], v%d, s[4:7], s%d offen offset:%d %s' % (r, r+3, vOffX, sOff[q], s*128, ldf))
            xidx[(s, q)] = nl; nl += 1
    a('s_mov_b32 s14, 1152')
    a('s_mov_b32 s15, 0x20000')
    a('s_mov_b32 s18, 1152')
    a('s_mov_b32 s19, 0x20000')
    a('v_lshl_add_u32 v%d, v%d, 1, v%d' % (vOffG, vT[1], vOffB))
    gidx = {}; bidx = {}
    for s in range(SL):
        if nogb:
            gidx[s] = nl - 1; continue
        a('buffer_load_ushort v%d, v%d, s[12:15], s%d offen offset:%d %s' % (G[s], vOffG, sGB, s*128, gbf))
        gidx[s] = nl; nl += 1
    for s in range(SL):
        if nogb:
            bidx[s] = nl - 1; continue
        r = Bf[s]
        a('buffer_load_dwordx4 v[%d:%d], v%d, s[16:19], s%d offen offset:%d %s' % (r, r+3, vOffB, sGB, s*128, gbf))
        bidx[s] = nl; nl += 1
    if init3:
        a('s_cmp_ge_u32 s%d, 4' % sW)
        a('s_cbranch_scc1 L_ib2')
        a('s_barrier')
        a('L_ib2:')
    a('s_mov_b32 s10, 37748736')
    a('s_mov_b32 s11, 0x20000')
    if pre:
        if pre == 1:
            a('s_cmp_lg_u32 s%d, 0' % sGB)
            a('s_cbranch_scc1 L_nopre')
        a('s_mov_b64 exec, 1')
        a('buffer_load_dword v%d, v%d, s[8:11], s%d offen nt' % (vPF, vOffX, sOff[0]))
        a('s_mov_b64 exec, -1')
        if pre == 1:
            a('L_nopre:')
        PRE_EXTRA = True
    a('s_mov_b32 s%d, 0x05040100' % sSelLo)
    a('s_mov_b32 s%d, 0x07060302' % sSelHi)
    a('s_mov_b32 s%d, 0xffff0000' % sMask)
    if gate == 'early':
        a('s_cmp_lt_u32 s%d, %d' % (sM, nearly))
        a('s_cbranch_scc1 L_nogo1')
        a('s_barrier')
        a('L_nogo1:')
    if gate_odd is not None:
        a('s_getreg_b32 s42, hwreg(HW_REG_XCC_ID)')
        a('s_and_b32 s42, s42, 1')
        a('s_cmp_ge_u32 s%d, %d' % (sM, nearly))
        a('s_cselect_b32 s43, 1, 0')
        a('s_and_b32 s34, s42, s43')
        a('s_andn2_b32 s35, s43, s42')
        if gate_odd == 'early':
            a('s_cmp_eq_u32 s34, 0')
            a('s_cbranch_scc1 L_nogo0')
            a('s_barrier')
            a('L_nogo0:')
    state = {'first': True}
    def waitfor(i):
        a('s_waitcnt vmcnt(%d)' % (nl - 1 - i))
        if ts and pt == 'first' and state['first']:
            a('s_memrealtime s[52:53]')
        state['first'] = False
    def unpack8(dst, src):
        for k in range(4):
            a('v_lshlrev_b32 v%d, 16, v%d' % (dst + 2*k, src + k))
            a('v_and_b32 v%d, s%d, v%d' % (dst + 2*k + 1, sMask, src + k))
    for s in range(SL):
        if dot == 'dot2':
            for qp in range(2):
                q0, q1 = 2*qp, 2*qp+1
                waitfor(xidx[(s, q1)])
                if gate == 'x%d%d' % (s, q1):
                    if gate_odd is not None:
                        a('s_cmp_eq_u32 s35, 0')
                    else:
                        a('s_cmp_lt_u32 s%d, %d' % (sM, nearly))
                    a('s_cbranch_scc1 L_nogo1')
                    a('s_barrier')
                    a('L_nogo1:')
                if gate_odd == 'x%d%d' % (s, q1):
                    a('s_cmp_eq_u32 s34, 0')
                    a('s_cbranch_scc1 L_nogo0')
                    a('s_barrier')
                    a('L_nogo0:')
                for k in range(4):
                    a('v_perm_b32 v%d, v%d, v%d, s%d' % (TMP + 2*k, X[s][q1] + k, X[s][q0] + k, sSelLo))
                    a('v_perm_b32 v%d, v%d, v%d, s%d' % (TMP + 2*k + 1, X[s][q1] + k, X[s][q0] + k, sSelHi))
                for k in range(8):
                    src2 = '0' if qp == 0 else 'v%d' % (ACC[s] + k)
                    a('v_dot2_f32_bf16 v%d, v%d, v%d, %s' % (ACC[s] + k, TMP + k, TMP + k, src2))
        else:
            for q in range(4):
                waitfor(xidx[(s, q)])
                unpack8(TMP, X[s][q])
                for k in range(4):
                    f = TMP + 2*k; c = ACC[s] + 2*k
                    if q == 0:
                        a('v_pk_mul_f32 v[%d:%d], v[%d:%d], v[%d:%d]' % (c, c+1, f, f+1, f, f+1))
                    else:
                        a('v_pk_fma_f32 v[%d:%d], v[%d:%d], v[%d:%d], v[%d:%d]' % (c, c+1, f, f+1, f, f+1, c, c+1))
        if gate == 'loaded' and s == SL - 1:
            a('s_cmp_lt_u32 s%d, %d' % (sM, nearly))
            a('s_cbranch_scc1 L_nogo1')
            a('s_barrier')
            a('L_nogo1:')
        c = ACC[s]
        for j in range(4):
            a('v_permlane32_swap_b32 v%d, v%d' % (c + j, c + j + 4))
        for j in range(4):
            a('v_add_f32 v%d, v%d, v%d' % (c + j, c + j, c + j + 4))
        for j in range(2):
            a('v_permlane16_swap_b32 v%d, v%d' % (c + j, c + j + 2))
        for j in range(2):
            a('v_add_f32 v%d, v%d, v%d' % (c + j, c + j, c + j + 2))
        a('v_add_f32_dpp v%d, v%d, v%d row_ror:8 row_mask:0xf bank_mask:0x3' % (c + 2, c, c))
        a('v_add_f32_dpp v%d, v%d, v%d row_ror:8 row_mask:0xf bank_mask:0xc' % (c + 2, c + 1, c + 1))
        a('v_sqrt_f32 v%d, v%d' % (c, c + 2))
    if ts and pt == 'loaded':
        a('s_memrealtime s[52:53]')
    t = vT[0]
    a('v_add_f32 v%d, v%d, v%d' % (t, ACC[0], ACC[1]))
    a('v_add_f32 v%d, v%d, v%d' % (vF, t, ACC[2]))
    t = vF
    for sh in (8, 4, 2, 1):
        a('v_add_f32_dpp v%d, v%d, v%d row_ror:%d row_mask:0xf bank_mask:0xf' % (t, t, t, sh))
    a('v_add_f32_dpp v%d, v%d, v%d row_bcast:15 row_mask:0xa bank_mask:0xf' % (t, t, t))
    a('v_add_f32_dpp v%d, v%d, v%d row_bcast:31 row_mask:0xc bank_mask:0xf' % (t, t, t))
    a('v_mov_b32 v%d, 1' % (vF + 1))
    a('s_mov_b32 exec_lo, 0')
    a('s_mov_b32 exec_hi, 0x80000000')
    a('ds_write_b64 v%d, v[%d:%d]' % (vT[3], vF, vF + 1))
    a('s_mov_b64 exec, -1')
    waitfor(gidx[SL-1])
    for s in range(SL):
        c = ACC[s]
        a('v_lshlrev_b32 v%d, 16, v%d' % (G[s], G[s]))
        a('v_mul_f32 v%d, v%d, v%d' % (c + 1, G[s], c))
        a('v_mov_b32 v%d, v%d' % (c, c + 1))
        a('v_mov_b32_dpp v%d, v%d row_ror:8 row_mask:0xf bank_mask:0xc' % (c, c))
        a('v_mov_b32_dpp v%d, v%d row_ror:8 row_mask:0xf bank_mask:0x3' % (c + 1, c + 1))
        for j in range(2):
            a('v_mov_b32 v%d, v%d' % (c + j + 2, c + j))
        for j in range(2):
            a('v_permlane16_swap_b32 v%d, v%d' % (c + j, c + j + 2))
        for j in range(4):
            a('v_mov_b32 v%d, v%d' % (c + j + 4, c + j))
        for j in range(4):
            a('v_permlane32_swap_b32 v%d, v%d' % (c + j, c + j + 4))
    a('v_mov_b32 v%d, s40' % vT[1])
    a('L_poll:')
    a('ds_read_b128 v[%d:%d], v%d' % (TMP, TMP + 3, vT[1]))
    a('ds_read_b64 v[%d:%d], v%d offset:16' % (TMP + 4, TMP + 5, vT[1]))
    a('s_waitcnt lgkmcnt(0)')
    a('v_and_b32 v%d, v%d, v%d' % (vT[0], TMP + 1, TMP + 3))
    a('v_and_b32 v%d, v%d, v%d' % (vT[0], vT[0], TMP + 5))
    a('v_cmp_ne_u32 vcc, 0, v%d' % vT[0])
    a('s_cbranch_vccz L_poll')
    t = vT[0]
    a('v_add_f32 v%d, v%d, v%d' % (t, TMP, TMP + 2))
    a('v_add_f32 v%d, v%d, v%d' % (t, t, TMP + 4))
    a('v_mul_f32 v%d, 0x3ae38e39, v%d' % (t, t))
    a('v_add_f32 v%d, 0x358637bd, v%d' % (t, t))
    a('v_rcp_f32 v%d, v%d' % (vR, t))
    if ts:
        a('s_memrealtime s[54:55]')
    waitfor(bidx[SL-1])
    for s in range(SL):
        c = ACC[s]
        for k in range(4):
            a('v_pk_fma_f32 v[%d:%d], v[%d:%d], v[%d:%d], 1.0 op_sel_hi:[1,0,0]' % (c+2*k, c+2*k+1, c+2*k, c+2*k+1, vR, vR+1))
        unpack8(BU, Bf[s])
        for q in range(4):
            f = X[s][q]
            unpack8(TMP, f)
            for k in range(4):
                u = TMP + 2*k
                a('v_pk_fma_f32 v[%d:%d], v[%d:%d], v[%d:%d], v[%d:%d]' % (u, u+1, u, u+1, c+2*k, c+2*k+1, BU+2*k, BU+2*k+1))
            for k in range(4):
                a('v_cvt_pk_bf16_f32 v%d, v%d, v%d' % (f + k, TMP + 2*k, TMP + 2*k + 1))
    if gate != 'none':
        if gate == 'all':
            a('s_barrier')
        else:
            if bgo2:
                a('s_barrier')
            else:
                a('s_cmp_ge_u32 s%d, %d' % (sM, nearly))
                a('s_cbranch_scc1 L_nogo2')
                a('s_barrier')
                a('L_nogo2:')
    if ts and pt == 'go':
        a('s_memrealtime s[52:53]')
    order = [(s, q) for q in range(4) for s in range(SL)] if sorder == 'q' else [(s, q) for s in range(SL) for q in range(4)]
    def stores(k, lab):
        for j, (s, q) in enumerate(order):
            if k and j >= k:
                a('s_waitcnt vmcnt(%d)' % (k - 1))
            elif ramp and 1 <= j <= ramp:
                a('s_waitcnt vmcnt(0)')
            f = X[s][q]
            fl = lastf if j >= len(order) - lastk else stf
            a('buffer_store_dwordx4 v[%d:%d], v%d, s[8:11], s%d offen offset:%d %s' % (f, f+3, vOffX, sOff[q], s*128, fl))
    if thr_even == thr_odd and thr_last is None:
        stores(thr_even, 'a')
    else:
        a('s_getreg_b32 s42, hwreg(HW_REG_XCC_ID)')
        a('s_bitcmp1_b32 s42, 0')
        a('s_cbranch_scc1 L_odd')
        if thr_last is not None:
            a('s_cmp_ge_u32 s%d, %d' % (sM, nearly))
            a('s_cbranch_scc1 L_last')
        stores(thr_even, 'e')
        a('s_branch L_fin')
        if thr_last is not None:
            a('L_last:')
            stores(thr_last, 'l')
            a('s_branch L_fin')
        a('L_odd:')
        stores(thr_odd, 'o')
        a('L_fin:')
    if ts == 3:
        spin_tail(a)
    elif ts:
        tsblock(a, sW)
    a('L_end:')
    a('s_endpgm')
    launch = 'grid=(%d,1,1) block=(%d,1,1) lds=%d' % (NWG, NW * 64, 32 * NB)
    return wrap(a.text(), launch, nv, 80 if ts else 48,
                comment='GRN v2: 3 waves/batch, %d batches/WG, ld="%s" st="%s" thr=%s/%s/%s gate=%s map=%s' % (NB, ldf, stf, thr_even, thr_odd, thr_last, gate, mapping))

if __name__ == '__main__':
    p = argparse.ArgumentParser()
    p.add_argument('--ld', default='nt'); p.add_argument('--st', default='sc1'); p.add_argument('--gb', default='')
    p.add_argument('--ts', type=int, default=0); p.add_argument('--te', type=int, default=1); p.add_argument('--to', type=int, default=0)
    p.add_argument('--tl', type=int, default=None); p.add_argument('--gate', default='early'); p.add_argument('--map', default='contig')
    p.add_argument('--nopf', action='store_true'); p.add_argument('--NB', type=int, default=4); p.add_argument('--dot', default='dot2')
    p.add_argument('--pt', default='loaded')
    p.add_argument('--kpre', type=int, default=0)
    p.add_argument('--noremap', action='store_true'); p.add_argument('--nearly', type=int, default=2); p.add_argument('--bgo2', action='store_true')
    p.add_argument('--nogb', action='store_true'); p.add_argument('--noinit', action='store_true')
    p.add_argument('--godd', default=None)
    p.add_argument('--lastk', type=int, default=0); p.add_argument('--lastf', default=''); p.add_argument('--sorder', default='q')
    p.add_argument('--pre', type=int, default=0)
    p.add_argument('--init2', action='store_true')
    p.add_argument('--init3', action='store_true')
    p.add_argument('--ramp', type=int, default=0)
    p.add_argument('-o', default='-')
    x = p.parse_args()
    x.ld = x.ld.replace('_', ' '); x.st = x.st.replace('_', ' '); x.lastf = x.lastf.replace('_', ' ')
    s = gen(x.ld, x.st, x.gb, x.ts, x.te, x.to, x.tl, x.gate, x.map, not x.nopf, x.NB, x.dot, x.pt, x.kpre, not x.noremap, x.nearly, x.bgo2, x.nogb, x.noinit, x.godd, x.lastk, x.lastf, 's', x.sorder, x.pre, x.init2 or x.init3, x.init3, x.ramp)
    open(x.o, 'w').write(s) if x.o != '-' else print(s)
```

```python
def spin_head(a):
    a('s_load_dwordx2 s[64:65], s[0:1], 32')
    a('s_mov_b32 s66, 256')
    a('s_mov_b32 s67, 0x20000')
    a('s_cmp_lg_u32 s2, 0')
    a('s_cbranch_scc1 L_nopub')
    a('s_waitcnt lgkmcnt(0)')
    a('v_cmp_eq_u32 vcc, 0, v0')
    a('s_and_saveexec_b64 s[68:69], vcc')
    a('s_cbranch_execz L_nopub2')
    a('v_mov_b32 v8, s50')
    a('v_or_b32 v8, 1, v8')
    a('v_mov_b32 v9, 0')
    a('buffer_store_dword v8, v9, s[64:67], 0 offen sc0 sc1')
    a('L_nopub2:')
    a('s_mov_b64 exec, s[68:69]')
    a('L_nopub:')

def spin_tail(a, src=58):
    a('s_memrealtime s[56:57]')
    a('s_waitcnt vmcnt(0)')
    a('s_memrealtime s[58:59]')
    a('v_mov_b32 v16, 0')
    a('s_waitcnt lgkmcnt(0)')
    a('s_mov_b64 exec, 1')
    a('L_poll2:')
    a('buffer_load_dword v17, v16, s[64:67], 0 offen sc0 sc1')
    a('s_waitcnt vmcnt(0)')
    a('v_readfirstlane_b32 s70, v17')
    a('s_cmp_eq_u32 s70, 0')
    a('s_cbranch_scc1 L_poll2')
    a('s_sub_u32 s71, s%d, s70' % src)
    a('s_min_u32 s71, s71, 10000')
    a('s_mul_i32 s71, s71, 50')
    a('L_spin:')
    a('s_memrealtime s[72:73]')
    a('s_waitcnt lgkmcnt(0)')
    a('s_sub_u32 s74, s72, s70')
    a('s_cmp_ge_u32 s74, s71')
    a('s_cbranch_scc1 L_end')
    a('s_sleep 16')
    a('s_branch L_spin')
```

```python
import sys, argparse
from asmlib import A, wrap
from spin import spin_head, spin_tail
from gen2 import tsblock

def gen(ldf='nt', stf='sc1', gbf='', ts=0, gate='x13', gate_odd='early', nearly=2, pf=True, pt='loaded', sorder='q',
        gbpos=4, name='standalone__grn__sampling_kernel'):
    SL = 3; NB = 4; NWG = 256; NW = 12
    a = A()
    vOffX, vOffB, vOffG = 1, 2, 3
    vT = [4, 5, 6, 7]
    nxt = 8
    X = [[0]*4 for _ in range(SL)]
    for s in range(SL):
        for q in range(4):
            X[s][q] = nxt; nxt += 8
    ACC = []
    for s in range(SL):
        ACC.append(nxt); nxt += 8
    Bf = []
    for s in range(SL):
        Bf.append(nxt); nxt += 8
    G = []
    for s in range(SL):
        G.append(nxt); nxt += 1
    if nxt % 2: nxt += 1
    vR = nxt; nxt += 2
    vF = nxt; nxt += 2
    TMP = nxt; nxt += 6
    nv = nxt
    vPF = 0
    sOff = [20, 21, 22, 23]
    sGB = 24; sW = 25; sP = 26; sM = 27; sMask = 30
    a('s_cmp_ge_u32 s2, %d' % NWG)
    a('s_cbranch_scc1 L_end')
    if ts:
        a('s_memrealtime s[50:51]')
    if ts == 3:
        spin_head(a)
    a('v_readfirstlane_b32 s%d, v0' % sW)
    a('s_lshr_b32 s%d, s%d, 6' % (sW, sW))
    a('s_cmp_lg_u32 s%d, 4' % sW)
    a('s_cbranch_scc1 L_noz')
    a('v_and_b32 v%d, 15, v0' % vT[3])
    a('v_lshlrev_b32 v%d, 3, v%d' % (vT[3], vT[3]))
    a('v_mov_b32 v%d, 0' % vF)
    a('v_mov_b32 v%d, 0' % (vF + 1))
    a('ds_write_b64 v%d, v[%d:%d]' % (vT[3], vF, vF + 1))
    a('s_waitcnt lgkmcnt(0)')
    a('L_noz:')
    a('s_load_dwordx2 s[4:5], s[0:1], 0')
    a('s_load_dwordx2 s[12:13], s[0:1], 8')
    a('s_load_dwordx2 s[16:17], s[0:1], 16')
    a('s_load_dwordx2 s[8:9], s[0:1], 24')
    if ts:
        a('s_load_dwordx2 s[44:45], s[0:1], 40')
    a('v_and_b32 v%d, 7, v0' % vT[2])
    a('v_bfe_u32 v%d, v0, 3, 3' % vT[1])
    a('v_lshlrev_b32 v%d, 4, v%d' % (vOffB, vT[2]))
    a('s_mul_i32 s%d, s%d, 43' % (sM, sW))
    a('v_mul_u32_u24 v%d, 1152, v%d' % (vOffX, vT[1]))
    a('s_lshr_b32 s%d, s%d, 7' % (sM, sM))
    a('v_add_u32 v%d, v%d, v%d' % (vOffX, vOffX, vOffB))
    a('s_mul_i32 s%d, s%d, 3' % (sP, sM))
    a('v_lshl_add_u32 v%d, v%d, 1, v%d' % (vOffG, vT[1], vOffB))
    a('s_sub_u32 s%d, s%d, s%d' % (sP, sW, sP))
    if pf:
        a('s_cmp_lg_u32 s%d, 0' % sW)
        a('s_cbranch_scc1 L_nopf')
        a('s_getpc_b64 s[32:33]')
        a('L_pc:')
        a('v_lshlrev_b32 v%d, 7, v0' % vPF)
        a('v_min_u32 v%d, L_end-L_pc, v%d' % (vPF, vPF))
        a('global_load_dword v%d, v%d, s[32:33]' % (vPF, vPF))
        a('L_nopf:')
    a('s_cmp_lt_u32 s%d, 4' % sW)
    a('s_cbranch_scc1 L_ib1')
    a('s_barrier')
    a('L_ib1:')
    a('s_and_b32 s%d, s2, 7' % sOff[0])
    a('s_lshl_b32 s%d, s%d, 7' % (sOff[0], sOff[0]))
    a('s_lshr_b32 s31, s2, 3')
    a('s_add_u32 s%d, s%d, s31' % (sOff[0], sOff[0]))
    a('s_lshl_b32 s31, s%d, 5' % sM)
    a('s_add_u32 s%d, s%d, s31' % (sOff[0], sOff[0]))
    a('s_mul_i32 s%d, s%d, 36864' % (sOff[0], sOff[0]))
    a('s_mul_i32 s%d, s%d, 384' % (sGB, sP))
    a('s_mov_b32 s6, 37748736')
    a('s_add_u32 s%d, s%d, s%d' % (sOff[0], sOff[0], sGB))
    a('s_mov_b32 s7, 0x20000')
    for q in range(1, 4):
        a('s_add_u32 s%d, s%d, %d' % (sOff[q], sOff[0], q * 9216))
    a('s_mov_b32 s14, 1152')
    a('s_mov_b32 s15, 0x20000')
    a('s_mov_b32 s18, 1152')
    a('s_mov_b32 s19, 0x20000')
    a('s_waitcnt lgkmcnt(0)')
    if ts and pt == 'kwait':
        a('s_memrealtime s[52:53]')
    nl = 0
    xidx = {}; gidx = {}; bidx = {}
    def gbloads():
        nonlocal nl
        for s in range(SL):
            a('buffer_load_ushort v%d, v%d, s[12:15], s%d offen offset:%d %s' % (G[s], vOffG, sGB, s*128, gbf))
            gidx[s] = nl; nl += 1
        for s in range(SL):
            r = Bf[s] + 4
            a('buffer_load_dwordx4 v[%d:%d], v%d, s[16:19], s%d offen offset:%d %s' % (r, r+3, vOffB, sGB, s*128, gbf))
            bidx[s] = nl; nl += 1
    nx = 0
    for s in range(SL):
        for q in range(4):
            if nx == gbpos:
                gbloads()
            r = X[s][q] + 4
            a('buffer_load_dwordx4 v[%d:%d], v%d, s[4:7], s%d offen offset:%d %s' % (r, r+3, vOffX, sOff[q], s*128, ldf))
            xidx[(s, q)] = nl; nl += 1; nx += 1
    if gbpos >= 12:
        gbloads()
    a('s_cmp_ge_u32 s%d, 4' % sW)
    a('s_cbranch_scc1 L_ib2')
    a('s_barrier')
    a('L_ib2:')
    a('s_mov_b32 s10, 37748736')
    a('s_mov_b32 s11, 0x20000')
    a('s_mov_b32 s%d, 0xffff0000' % sMask)
    a('s_lshl_b32 s40, s%d, 5' % sM)
    a('s_lshl_b32 s41, s%d, 3' % sP)
    a('s_add_u32 s41, s41, s40')
    a('v_mov_b32 v%d, s41' % vT[3])
    a('v_mov_b32 v%d, s40' % vT[1])
    a('v_mov_b32 v%d, 1' % (vF + 1))
    a('s_getreg_b32 s42, hwreg(HW_REG_XCC_ID)')
    a('s_and_b32 s42, s42, 1')
    a('s_cmp_ge_u32 s%d, %d' % (sM, nearly))
    a('s_cselect_b32 s43, 1, 0')
    a('s_and_b32 s34, s42, s43')
    a('s_andn2_b32 s35, s43, s42')
    def gatebar(reg, lab):
        a('s_cmp_eq_u32 s%d, 0' % reg)
        a('s_cbranch_scc1 %s' % lab)
        a('s_barrier')
        a('%s:' % lab)
    if gate_odd == 'early':
        gatebar(34, 'L_g0')
    if gate == 'early':
        gatebar(35, 'L_g1')
    state = {'first': True}
    def waitfor(i):
        a('s_waitcnt vmcnt(%d)' % (nl - 1 - i))
        if ts and pt == 'first' and state['first']:
            a('s_memrealtime s[52:53]')
        state['first'] = False
    def unpack8(dst, src):
        for k in range(4):
            a('v_lshlrev_b32 v%d, 16, v%d' % (dst + 2*k, src + k))
            a('v_and_b32 v%d, s%d, v%d' % (dst + 2*k + 1, sMask, src + k))
    def bcast(s):
        c = ACC[s]
        a('v_lshlrev_b32 v%d, 16, v%d' % (G[s], G[s]))
        a('v_mul_f32 v%d, v%d, v%d' % (c + 1, G[s], c))
        a('v_mov_b32 v%d, v%d' % (c, c + 1))
        a('v_mov_b32_dpp v%d, v%d row_ror:8 row_mask:0xf bank_mask:0xc' % (c, c))
        a('v_mov_b32_dpp v%d, v%d row_ror:8 row_mask:0xf bank_mask:0x3' % (c + 1, c + 1))
        for j in range(2):
            a('v_mov_b32 v%d, v%d' % (c + j + 2, c + j))
        for j in range(2):
            a('v_permlane16_swap_b32 v%d, v%d' % (c + j, c + j + 2))
        for j in range(4):
            a('v_mov_b32 v%d, v%d' % (c + j + 4, c + j))
        for j in range(4):
            a('v_permlane32_swap_b32 v%d, v%d' % (c + j, c + j + 4))
    gsum = vF
    gb_done = False
    for s in range(SL):
        for q in range(4):
            waitfor(xidx[(s, q)])
            if gate == 'x%d%d' % (s, q):
                gatebar(35, 'L_g1')
            if gate_odd == 'x%d%d' % (s, q):
                gatebar(34, 'L_g0')
            unpack8(X[s][q], X[s][q] + 4)
            for k in range(4):
                f = X[s][q] + 2*k; c = ACC[s] + 2*k
                if q == 0:
                    a('v_pk_mul_f32 v[%d:%d], v[%d:%d], v[%d:%d]' % (c, c+1, f, f+1, f, f+1))
                else:
                    a('v_pk_fma_f32 v[%d:%d], v[%d:%d], v[%d:%d], v[%d:%d]' % (c, c+1, f, f+1, f, f+1, c, c+1))
        c = ACC[s]
        for j in range(4):
            a('v_permlane32_swap_b32 v%d, v%d' % (c + j, c + j + 4))
        for j in range(4):
            a('v_add_f32 v%d, v%d, v%d' % (c + j, c + j, c + j + 4))
        for j in range(2):
            a('v_permlane16_swap_b32 v%d, v%d' % (c + j, c + j + 2))
        for j in range(2):
            a('v_add_f32 v%d, v%d, v%d' % (c + j, c + j, c + j + 2))
        a('v_add_f32_dpp v%d, v%d, v%d row_ror:8 row_mask:0xf bank_mask:0x3' % (c + 2, c, c))
        a('v_add_f32_dpp v%d, v%d, v%d row_ror:8 row_mask:0xf bank_mask:0xc' % (c + 2, c + 1, c + 1))
        a('v_sqrt_f32 v%d, v%d' % (c, c + 2))
        if s == 0:
            a('v_mov_b32 v%d, v%d' % (gsum, c))
        else:
            a('v_add_f32 v%d, v%d, v%d' % (gsum, gsum, c))
        if s < SL - 1:
            if bidx[SL-1] < xidx[(s + 1, 0)]:
                if not gb_done:
                    waitfor(bidx[SL-1])
                    for u in range(SL):
                        unpack8(Bf[u], Bf[u] + 4)
                    gb_done = True
                bcast(s)
    if ts and pt == 'loaded':
        a('s_memrealtime s[52:53]')
    t = gsum
    for sh in (8, 4, 2, 1):
        a('v_add_f32_dpp v%d, v%d, v%d row_ror:%d row_mask:0xf bank_mask:0xf' % (t, t, t, sh))
    a('v_add_f32_dpp v%d, v%d, v%d row_bcast:15 row_mask:0xa bank_mask:0xf' % (t, t, t))
    a('v_add_f32_dpp v%d, v%d, v%d row_bcast:31 row_mask:0xc bank_mask:0xf' % (t, t, t))
    a('s_mov_b32 exec_lo, 0')
    a('s_mov_b32 exec_hi, 0x80000000')
    a('ds_write_b64 v%d, v[%d:%d]' % (vT[3], vF, vF + 1))
    a('s_mov_b64 exec, -1')
    if gb_done:
        bcast(SL - 1)
    else:
        waitfor(bidx[SL-1])
        for s in range(SL):
            bcast(s)
        for u in range(SL):
            unpack8(Bf[u], Bf[u] + 4)
    a('L_poll:')
    a('ds_read_b128 v[%d:%d], v%d' % (TMP, TMP + 3, vT[1]))
    a('ds_read_b64 v[%d:%d], v%d offset:16' % (TMP + 4, TMP + 5, vT[1]))
    a('s_waitcnt lgkmcnt(0)')
    a('v_and_b32 v%d, v%d, v%d' % (vT[0], TMP + 1, TMP + 3))
    a('v_and_b32 v%d, v%d, v%d' % (vT[0], vT[0], TMP + 5))
    a('v_cmp_ne_u32 vcc, 0, v%d' % vT[0])
    a('s_cbranch_vccz L_poll')
    t = vT[0]
    a('v_add_f32 v%d, v%d, v%d' % (t, TMP, TMP + 2))
    a('v_add_f32 v%d, v%d, v%d' % (t, t, TMP + 4))
    a('v_mul_f32 v%d, 0x3ae38e39, v%d' % (t, t))
    a('v_add_f32 v%d, 0x358637bd, v%d' % (t, t))
    a('v_rcp_f32 v%d, v%d' % (vR, t))
    if ts:
        a('s_memrealtime s[54:55]')
    for s in range(SL):
        c = ACC[s]
        for k in range(4):
            a('v_pk_fma_f32 v[%d:%d], v[%d:%d], v[%d:%d], 1.0 op_sel_hi:[1,0,0]' % (c+2*k, c+2*k+1, c+2*k, c+2*k+1, vR, vR+1))
    a('s_cmp_lg_u32 s43, 0')
    a('s_cbranch_scc1 L_g2')
    a('s_barrier')
    a('L_g2:')
    if ts and pt == 'go':
        a('s_memrealtime s[52:53]')
    order = [(s, q) for q in range(4) for s in range(SL)] if sorder == 'q' else [(s, q) for s in range(SL) for q in range(4)]
    for (s, q) in order:
        f = X[s][q]; c = ACC[s]; bb = Bf[s]
        for k in range(4):
            a('v_pk_fma_f32 v[%d:%d], v[%d:%d], v[%d:%d], v[%d:%d]' % (f+2*k, f+2*k+1, f+2*k, f+2*k+1, c+2*k, c+2*k+1, bb+2*k, bb+2*k+1))
        for k in range(4):
            a('v_cvt_pk_bf16_f32 v%d, v%d, v%d' % (f + k, f + 2*k, f + 2*k + 1))
        a('buffer_store_dwordx4 v[%d:%d], v%d, s[8:11], s%d offen offset:%d %s' % (f, f+3, vOffX, sOff[q], s*128, stf))
    if ts == 3:
        spin_tail(a)
    elif ts:
        tsblock(a, sW)
    a('L_end:')
    a('s_endpgm')
    launch = 'grid=(%d,1,1) block=(%d,1,1) lds=%d' % (NWG, NW * 64, 32 * NB)
    return wrap(a.text(), launch, nv, 80 if ts else 48,
                comment='GRN v3: 3 waves/batch, 4 batches/WG, f32-resident x, ld="%s" st="%s" gate=%s/%s' % (ldf, stf, gate, gate_odd))

if __name__ == '__main__':
    p = argparse.ArgumentParser()
    p.add_argument('--ld', default='nt'); p.add_argument('--st', default='sc1'); p.add_argument('--gb', default='')
    p.add_argument('--ts', type=int, default=0); p.add_argument('--gate', default='x13'); p.add_argument('--godd', default='early')
    p.add_argument('--nearly', type=int, default=2); p.add_argument('--nopf', action='store_true'); p.add_argument('--pt', default='loaded')
    p.add_argument('--sorder', default='q'); p.add_argument('--gbpos', type=int, default=4)
    p.add_argument('-o', default='-')
    x = p.parse_args()
    x.ld = x.ld.replace('_', ' '); x.st = x.st.replace('_', ' ')
    s = gen(x.ld, x.st, x.gb, x.ts, x.gate, x.godd, x.nearly, not x.nopf, x.pt, x.sorder, x.gbpos)
    open(x.o, 'w').write(s) if x.o != '-' else print(s)
```

```python
from asmlib import A

NWG, NW, SL = 256, 12, 3

def body():
    a = A()
    c = lambda s: a('; ' + s)
    vOffX, vOffB, vOffG = 1, 2, 3
    vT = [4, 5, 6, 7]
    nxt = 8
    X = [[0]*4 for _ in range(SL)]
    for s in range(SL):
        for q in range(4):
            X[s][q] = nxt; nxt += 8
    ACC = [nxt + 8*s for s in range(SL)]; nxt += 8*SL
    Bf = [nxt + 8*s for s in range(SL)]; nxt += 8*SL
    G = [nxt + s for s in range(SL)]; nxt += SL
    nxt += nxt % 2
    vR = nxt; nxt += 2
    vF = nxt; nxt += 2
    TMP = nxt; nxt += 6
    nv = nxt
    sOff = [20, 21, 22, 23]
    sGB, sW, sP, sM, sMask = 24, 25, 26, 27, 30

    c('---- kernarg pointers straight into the descriptor slots: x s[4:5], out s[8:9], g s[12:13], b s[16:17]')
    a('s_load_dwordx2 s[4:5], s[0:1], 0')
    a('s_load_dwordx2 s[12:13], s[0:1], 8')
    a('s_load_dwordx2 s[16:17], s[0:1], 16')
    a('s_load_dwordx2 s[8:9], s[0:1], 24')
    a('s_cmp_ge_u32 s2, %d' % NWG)
    a('s_cbranch_scc1 L_end')
    a('v_readfirstlane_b32 s%d, v0' % sW)
    a('s_lshr_b32 s%d, s%d, 6' % (sW, sW))
    c('wave 4 clears the 16 LDS hand-off slots {partial sum, flag}; the init barrier orders this before any use')
    a('s_cmp_lg_u32 s%d, 4' % sW)
    a('s_cbranch_scc1 L_noz')
    a('v_and_b32 v%d, 15, v0' % vT[3])
    a('v_lshlrev_b32 v%d, 3, v%d' % (vT[3], vT[3]))
    a('v_mov_b32 v%d, 0' % vF)
    a('v_mov_b32 v%d, 0' % (vF + 1))
    a('ds_write_b64 v%d, v[%d:%d]' % (vT[3], vF, vF + 1))
    a('s_waitcnt lgkmcnt(0)')
    a('L_noz:')
    c('lane l: row r = (l>>3)&7 of a row group, 16-byte chunk (l&7) of a 128-byte column slab')
    c('v1 = r*1152 + chunk*16 (x/out), v2 = chunk*16 (b), v3 = v2 + 2*r (g, one column per lane); m = w/3 batch, part = w%3')
    a('v_and_b32 v%d, 7, v0' % vT[2])
    a('v_bfe_u32 v%d, v0, 3, 3' % vT[1])
    a('v_lshlrev_b32 v%d, 4, v%d' % (vOffB, vT[2]))
    a('s_mul_i32 s%d, s%d, 43' % (sM, sW))
    a('v_mul_u32_u24 v%d, 1152, v%d' % (vOffX, vT[1]))
    a('s_lshr_b32 s%d, s%d, 7' % (sM, sM))
    a('v_add_u32 v%d, v%d, v%d' % (vOffX, vOffX, vOffB))
    a('s_mul_i32 s%d, s%d, 3' % (sP, sM))
    a('v_lshl_add_u32 v%d, v%d, 1, v%d' % (vOffG, vT[1], vOffB))
    a('s_sub_u32 s%d, s%d, s%d' % (sP, sW, sP))
    c('wave 0 pulls the rest of this kernel code into L2 (one lane per 128-byte line, result unused)')
    a('s_cmp_lg_u32 s%d, 0' % sW)
    a('s_cbranch_scc1 L_nopf')
    a('s_getpc_b64 s[32:33]')
    a('L_pc:')
    a('v_lshlrev_b32 v0, 7, v0')
    a('v_min_u32 v0, L_end-L_pc, v0')
    a('global_load_dword v0, v0, s[32:33]')
    a('L_nopf:')
    c('init barrier: waves 4..11 arrive before their loads, waves 0..3 after theirs (costs nothing: younger waves queue behind)')
    a('s_cmp_lt_u32 s%d, 4' % sW)
    a('s_cbranch_scc1 L_ib1')
    a('s_barrier')
    a('L_ib1:')
    c('batch = (wg&7)*128 + (wg>>3) + 32*m : workgroups that share a die stream one contiguous range')
    a('s_and_b32 s%d, s2, 7' % sOff[0])
    a('s_lshl_b32 s%d, s%d, 7' % (sOff[0], sOff[0]))
    a('s_lshr_b32 s31, s2, 3')
    a('s_add_u32 s%d, s%d, s31' % (sOff[0], sOff[0]))
    a('s_lshl_b32 s31, s%d, 5' % sM)
    a('s_add_u32 s%d, s%d, s31' % (sOff[0], sOff[0]))
    a('s_mul_i32 s%d, s%d, 36864' % (sOff[0], sOff[0]))
    a('s_mul_i32 s%d, s%d, 384' % (sGB, sP))
    a('s_mov_b32 s6, 37748736')
    a('s_add_u32 s%d, s%d, s%d' % (sOff[0], sOff[0], sGB))
    a('s_mov_b32 s7, 0x20000')
    for q in range(1, 4):
        a('s_add_u32 s%d, s%d, %d' % (sOff[q], sOff[0], q * 9216))
    a('s_mov_b32 s14, 1152')
    a('s_mov_b32 s15, 0x20000')
    a('s_mov_b32 s18, 1152')
    a('s_mov_b32 s19, 0x20000')
    a('s_waitcnt lgkmcnt(0)')
    c('---- all loads of this wave: slab 0 (4 row groups), g, b, slab 1, slab 2')
    nl = 0
    xidx, gidx, bidx = {}, {}, {}
    for s in range(SL):
        if s == 1:
            for u in range(SL):
                a('buffer_load_ushort v%d, v%d, s[12:15], s%d offen offset:%d' % (G[u], vOffG, sGB, u*128))
                gidx[u] = nl; nl += 1
            for u in range(SL):
                r = Bf[u] + 4
                a('buffer_load_dwordx4 v[%d:%d], v%d, s[16:19], s%d offen offset:%d' % (r, r+3, vOffB, sGB, u*128))
                bidx[u] = nl; nl += 1
        for q in range(4):
            r = X[s][q] + 4
            a('buffer_load_dwordx4 v[%d:%d], v%d, s[4:7], s%d offen offset:%d nt' % (r, r+3, vOffX, sOff[q], s*128))
            xidx[(s, q)] = nl; nl += 1
    a('s_cmp_ge_u32 s%d, 4' % sW)
    a('s_cbranch_scc1 L_ib2')
    a('s_barrier')
    a('L_ib2:')
    a('s_mov_b32 s10, 37748736')
    a('s_mov_b32 s11, 0x20000')
    a('s_mov_b32 s%d, 0xffff0000' % sMask)
    a('s_lshl_b32 s40, s%d, 5' % sM)
    a('s_lshl_b32 s41, s%d, 3' % sP)
    a('s_add_u32 s41, s41, s40')
    a('v_mov_b32 v%d, s41' % vT[3])
    a('v_mov_b32 v%d, s40' % vT[1])
    a('v_mov_b32 v%d, 1' % (vF + 1))
    c('store gate: batches 0,1 hold their stores until the reads of batches 2,3 are (nearly) through.')
    c('waves of batches 2,3 pass the gate barrier right here on odd dies, after their second slab landed on even dies (speed only)')
    a('s_getreg_b32 s42, hwreg(HW_REG_XCC_ID)')
    a('s_and_b32 s42, s42, 1')
    a('s_cmp_ge_u32 s%d, 2' % sM)
    a('s_cselect_b32 s43, 1, 0')
    a('s_and_b32 s34, s42, s43')
    a('s_andn2_b32 s35, s43, s42')
    def gatebar(reg, lab):
        a('s_cmp_eq_u32 s%d, 0' % reg)
        a('s_cbranch_scc1 %s' % lab)
        a('s_barrier')
        a('%s:' % lab)
    gatebar(34, 'L_g0')
    waitfor = lambda i: a('s_waitcnt vmcnt(%d)' % (nl - 1 - i))
    def unpack8(dst, src):
        for k in range(4):
            a('v_lshlrev_b32 v%d, 16, v%d' % (dst + 2*k, src + k))
            a('v_and_b32 v%d, s%d, v%d' % (dst + 2*k + 1, sMask, src + k))
    def bcast(s):
        r = ACC[s]
        c('p = g*gx, then spread the 64 per-lane columns back to the x layout (8 columns per lane)')
        a('v_lshlrev_b32 v%d, 16, v%d' % (G[s], G[s]))
        a('v_mul_f32 v%d, v%d, v%d' % (r + 1, G[s], r))
        a('v_mov_b32 v%d, v%d' % (r, r + 1))
        a('v_mov_b32_dpp v%d, v%d row_ror:8 row_mask:0xf bank_mask:0xc' % (r, r))
        a('v_mov_b32_dpp v%d, v%d row_ror:8 row_mask:0xf bank_mask:0x3' % (r + 1, r + 1))
        for j in range(2):
            a('v_mov_b32 v%d, v%d' % (r + j + 2, r + j))
        for j in range(2):
            a('v_permlane16_swap_b32 v%d, v%d' % (r + j, r + j + 2))
        for j in range(4):
            a('v_mov_b32 v%d, v%d' % (r + j + 4, r + j))
        for j in range(4):
            a('v_permlane32_swap_b32 v%d, v%d' % (r + j, r + j + 4))
    gsum = vF
    for s in range(SL):
        c('---- slab %d: bf16 -> f32 (kept), per-lane sums of squares over the 4 row groups' % s)
        for q in range(4):
            waitfor(xidx[(s, q)])
            if (s, q) == (1, 3):
                gatebar(35, 'L_g1')
            unpack8(X[s][q], X[s][q] + 4)
            for k in range(4):
                f = X[s][q] + 2*k; r = ACC[s] + 2*k
                if q == 0:
                    a('v_pk_mul_f32 v[%d:%d], v[%d:%d], v[%d:%d]' % (r, r+1, f, f+1, f, f+1))
                else:
                    a('v_pk_fma_f32 v[%d:%d], v[%d:%d], v[%d:%d], v[%d:%d]' % (r, r+1, f, f+1, f, f+1, r, r+1))
        c('reduce-scatter over the 8 rows held by lane bits 5,4,3: lane l ends with column 8*(l&7) + (l>>3); gx = sqrt')
        r = ACC[s]
        for j in range(4):
            a('v_permlane32_swap_b32 v%d, v%d' % (r + j, r + j + 4))
        for j in range(4):
            a('v_add_f32 v%d, v%d, v%d' % (r + j, r + j, r + j + 4))
        for j in range(2):
            a('v_permlane16_swap_b32 v%d, v%d' % (r + j, r + j + 2))
        for j in range(2):
            a('v_add_f32 v%d, v%d, v%d' % (r + j, r + j, r + j + 2))
        a('v_add_f32_dpp v%d, v%d, v%d row_ror:8 row_mask:0xf bank_mask:0x3' % (r + 2, r, r))
        a('v_add_f32_dpp v%d, v%d, v%d row_ror:8 row_mask:0xf bank_mask:0xc' % (r + 2, r + 1, r + 1))
        a('v_sqrt_f32 v%d, v%d' % (r, r + 2))
        if s == 0:
            a('v_mov_b32 v%d, v%d' % (gsum, r))
        else:
            a('v_add_f32 v%d, v%d, v%d' % (gsum, gsum, r))
        if s == 0:
            waitfor(bidx[SL-1])
            c('b -> f32 in the x layout')
            for u in range(SL):
                unpack8(Bf[u], Bf[u] + 4)
        if s < SL - 1:
            bcast(s)
    c('---- sum of gx over this wave (192 columns) -> lane 63 -> LDS slot {sum, 1}')
    t = gsum
    for sh in (8, 4, 2, 1):
        a('v_add_f32_dpp v%d, v%d, v%d row_ror:%d row_mask:0xf bank_mask:0xf' % (t, t, t, sh))
    a('v_add_f32_dpp v%d, v%d, v%d row_bcast:15 row_mask:0xa bank_mask:0xf' % (t, t, t))
    a('v_add_f32_dpp v%d, v%d, v%d row_bcast:31 row_mask:0xc bank_mask:0xf' % (t, t, t))
    a('s_mov_b32 exec_lo, 0')
    a('s_mov_b32 exec_hi, 0x80000000')
    a('ds_write_b64 v%d, v[%d:%d]' % (vT[3], vF, vF + 1))
    a('s_mov_b64 exec, -1')
    bcast(SL - 1)
    c('wait for the three column parts of this batch')
    a('L_poll:')
    a('ds_read_b128 v[%d:%d], v%d' % (TMP, TMP + 3, vT[1]))
    a('ds_read_b64 v[%d:%d], v%d offset:16' % (TMP + 4, TMP + 5, vT[1]))
    a('s_waitcnt lgkmcnt(0)')
    a('v_and_b32 v%d, v%d, v%d' % (vT[0], TMP + 1, TMP + 3))
    a('v_and_b32 v%d, v%d, v%d' % (vT[0], vT[0], TMP + 5))
    a('v_cmp_ne_u32 vcc, 0, v%d' % vT[0])
    a('s_cbranch_vccz L_poll')
    c('r = 1 / (mean(gx) + 1e-6);  scale = g*gx*r + 1')
    t = vT[0]
    a('v_add_f32 v%d, v%d, v%d' % (t, TMP, TMP + 2))
    a('v_add_f32 v%d, v%d, v%d' % (t, t, TMP + 4))
    a('v_mul_f32 v%d, 0x3ae38e39, v%d' % (t, t))
    a('v_add_f32 v%d, 0x358637bd, v%d' % (t, t))
    a('v_rcp_f32 v%d, v%d' % (vR, t))
    for s in range(SL):
        r = ACC[s]
        for k in range(4):
            a('v_pk_fma_f32 v[%d:%d], v[%d:%d], v[%d:%d], 1.0 op_sel_hi:[1,0,0]' % (r+2*k, r+2*k+1, r+2*k, r+2*k+1, vR, vR+1))
    c('store gate for batches 0,1')
    a('s_cmp_lg_u32 s43, 0')
    a('s_cbranch_scc1 L_g2')
    a('s_barrier')
    a('L_g2:')
    c('---- out = x*scale + b, rounded to bf16, written through')
    for q in range(4):
        for s in range(SL):
            f = X[s][q]; r = ACC[s]; bb = Bf[s]
            for k in range(4):
                a('v_pk_fma_f32 v[%d:%d], v[%d:%d], v[%d:%d], v[%d:%d]' % (f+2*k, f+2*k+1, f+2*k, f+2*k+1, r+2*k, r+2*k+1, bb+2*k, bb+2*k+1))
            for k in range(4):
                a('v_cvt_pk_bf16_f32 v%d, v%d, v%d' % (f + k, f + 2*k, f + 2*k + 1))
            a('buffer_store_dwordx4 v[%d:%d], v%d, s[8:11], s%d offen offset:%d sc1' % (f, f+3, vOffX, sOff[q], s*128))
    a('L_end:')
    a('s_endpgm')
    return a.text(), nv

HEAD = """; GRN (global response normalisation): out = x * (g * gx / (mean_d(gx) + 1e-6) + 1) + b,  gx[d] = sqrt(sum_s x[s][d]^2)
; @launch grid=(256,1,1) block=(768,1,1) lds=128
"""

def main():
    txt, nv = body()
    name = 'standalone__grn__sampling_kernel'
    s = HEAD
    s += '.amdgcn_target "amdgcn-amd-amdhsa--gfx950"\n.text\n'
    s += '.globl %s\n.p2align 8\n.type %s,@function\n%s:\n' % (name, name, name)
    s += txt
    s += '.section .rodata,"a"\n.p2align 6\n.amdhsa_kernel %s\n' % name
    s += '  .amdhsa_next_free_vgpr %d\n  .amdhsa_next_free_sgpr 48\n  .amdhsa_accum_offset %d\n' % (nv, (nv + 3)//4*4)
    s += '  .amdhsa_group_segment_fixed_size 0\n  .amdhsa_kernarg_size 48\n  .amdhsa_user_sgpr_count 2\n'
    s += '  .amdhsa_user_sgpr_kernarg_segment_ptr 1\n  .amdhsa_system_sgpr_workgroup_id_x 1\n'
    s += '  .amdhsa_float_denorm_mode_32 3\n.end_amdhsa_kernel\n'
    return s

if __name__ == '__main__':
    import sys
    open(sys.argv[1], 'w').write(main())
```

```python
def spin_head(a):
    a('s_load_dwordx2 s[64:65], s[0:1], 32')
    a('s_mov_b32 s66, 256')
    a('s_mov_b32 s67, 0x20000')
    a('s_cmp_lg_u32 s2, 0')
    a('s_cbranch_scc1 L_nopub')
    a('s_waitcnt lgkmcnt(0)')
    a('v_cmp_eq_u32 vcc, 0, v0')
    a('s_and_saveexec_b64 s[68:69], vcc')
    a('s_cbranch_execz L_nopub2')
    a('v_mov_b32 v8, s50')
    a('v_or_b32 v8, 1, v8')
    a('v_mov_b32 v9, 0')
    a('buffer_store_dword v8, v9, s[64:67], 0 offen sc0 sc1')
    a('L_nopub2:')
    a('s_mov_b64 exec, s[68:69]')
    a('L_nopub:')

def spin_tail(a, src=58, xcc=None):
    a('s_memrealtime s[56:57]')
    a('s_waitcnt vmcnt(0)')
    a('s_memrealtime s[58:59]')
    a('v_mov_b32 v16, 0')
    a('s_waitcnt lgkmcnt(0)')
    a('s_mov_b64 exec, 1')
    if xcc is not None:
        a('s_getreg_b32 s75, hwreg(HW_REG_XCC_ID)')
        a('s_lshl_b32 s75, 1, s75')
        a('s_and_b32 s75, s75, %d' % xcc)
        a('s_cbranch_scc0 L_end')
    a('L_poll2:')
    a('buffer_load_dword v17, v16, s[64:67], 0 offen sc0 sc1')
    a('s_waitcnt vmcnt(0)')
    a('v_readfirstlane_b32 s70, v17')
    a('s_cmp_eq_u32 s70, 0')
    a('s_cbranch_scc1 L_poll2')
    a('s_sub_u32 s71, s%d, s70' % src)
    a('s_max_i32 s71, s71, 0')
    a('s_min_u32 s71, s71, 10000')
    a('s_mul_i32 s71, s71, 50')
    a('L_spin:')
    a('s_memrealtime s[72:73]')
    a('s_waitcnt lgkmcnt(0)')
    a('s_sub_u32 s74, s72, s70')
    a('s_cmp_ge_u32 s74, s71')
    a('s_cbranch_scc1 L_end')
    a('s_sleep 16')
    a('s_branch L_spin')
```

```python
import sys, argparse
from asmlib import A, wrap
from spin import spin_head, spin_tail
from gen2 import tsblock

def gen(ldf='nt', stf='sc1', gbf='', ts=0, gate='x13', gate_odd='early', nearly=2, pf=True, pt='loaded', sorder='q',
        gbpos=4, src=58, xcc=None, pre=0, name='standalone__grn__sampling_kernel'):
    SL = 3; NB = 4; NWG = 256; NW = 12
    a = A()
    vOffX, vOffB, vOffG = 1, 2, 3
    vT = [4, 5, 6, 7]
    nxt = 8
    X = [[0]*4 for _ in range(SL)]
    for s in range(SL):
        for q in range(4):
            X[s][q] = nxt; nxt += 8
    ACC = []
    for s in range(SL):
        ACC.append(nxt); nxt += 8
    Bf = []
    for s in range(SL):
        Bf.append(nxt); nxt += 8
    G = []
    for s in range(SL):
        G.append(nxt); nxt += 1
    if nxt % 2: nxt += 1
    vR = nxt; nxt += 2
    vF = nxt; nxt += 2
    TMP = nxt; nxt += 7
    nv = nxt
    vPF = 0
    sOff = [20, 21, 22, 23]
    sGB = 24; sW = 25; sP = 26; sM = 27; sMask = 30
    a('s_load_dwordx2 s[4:5], s[0:1], 0')
    a('s_load_dwordx2 s[12:13], s[0:1], 8')
    a('s_load_dwordx2 s[16:17], s[0:1], 16')
    a('s_load_dwordx2 s[8:9], s[0:1], 24')
    a('s_cmp_ge_u32 s2, %d' % NWG)
    a('s_cbranch_scc1 L_end')
    if ts:
        a('s_memrealtime s[50:51]')
        a('s_load_dwordx2 s[44:45], s[0:1], 40')
    if ts == 3:
        spin_head(a)
    a('v_readfirstlane_b32 s%d, v0' % sW)
    a('s_lshr_b32 s%d, s%d, 6' % (sW, sW))
    a('s_cmp_lg_u32 s%d, 4' % sW)
    a('s_cbranch_scc1 L_noz')
    a('v_and_b32 v%d, 15, v0' % vT[3])
    a('v_lshlrev_b32 v%d, 3, v%d' % (vT[3], vT[3]))
    a('v_mov_b32 v%d, 0' % vF)
    a('v_mov_b32 v%d, 0' % (vF + 1))
    a('ds_write_b64 v%d, v[%d:%d]' % (vT[3], vF, vF + 1))
    a('s_waitcnt lgkmcnt(0)')
    a('L_noz:')
    a('v_and_b32 v%d, 7, v0' % vT[2])
    a('v_bfe_u32 v%d, v0, 3, 3' % vT[1])
    a('v_lshlrev_b32 v%d, 4, v%d' % (vOffB, vT[2]))
    a('s_mul_i32 s%d, s%d, 43' % (sM, sW))
    a('v_mul_u32_u24 v%d, 1152, v%d' % (vOffX, vT[1]))
    a('s_lshr_b32 s%d, s%d, 7' % (sM, sM))
    a('v_add_u32 v%d, v%d, v%d' % (vOffX, vOffX, vOffB))
    a('s_mul_i32 s%d, s%d, 3' % (sP, sM))
    a('v_lshl_add_u32 v%d, v%d, 1, v%d' % (vOffG, vT[1], vOffB))
    a('s_sub_u32 s%d, s%d, s%d' % (sP, sW, sP))
    if pf:
        a('s_cmp_lg_u32 s%d, 0' % sW)
        a('s_cbranch_scc1 L_nopf')
        a('s_getpc_b64 s[32:33]')
        a('L_pc:')
        a('v_lshlrev_b32 v%d, 7, v0' % vPF)
        a('v_min_u32 v%d, L_end-L_pc, v%d' % (vPF, vPF))
        a('global_load_dword v%d, v%d, s[32:33]' % (vPF, vPF))
        a('L_nopf:')
    a('s_cmp_lt_u32 s%d, 4' % sW)
    a('s_cbranch_scc1 L_ib1')
    a('s_barrier')
    a('L_ib1:')
    a('s_and_b32 s%d, s2, 7' % sOff[0])
    a('s_lshl_b32 s%d, s%d, 7' % (sOff[0], sOff[0]))
    a('s_lshr_b32 s31, s2, 3')
    a('s_add_u32 s%d, s%d, s31' % (sOff[0], sOff[0]))
    a('s_lshl_b32 s31, s%d, 5' % sM)
    a('s_add_u32 s%d, s%d, s31' % (sOff[0], sOff[0]))
    a('s_mul_i32 s%d, s%d, 36864' % (sOff[0], sOff[0]))
    a('s_mul_i32 s%d, s%d, 384' % (sGB, sP))
    a('s_mov_b32 s6, 37748736')
    a('s_add_u32 s%d, s%d, s%d' % (sOff[0], sOff[0], sGB))
    a('s_mov_b32 s7, 0x20000')
    for q in range(1, 4):
        a('s_add_u32 s%d, s%d, %d' % (sOff[q], sOff[0], q * 9216))
    a('s_mov_b32 s14, 1152')
    a('s_mov_b32 s15, 0x20000')
    a('s_mov_b32 s18, 1152')
    a('s_mov_b32 s19, 0x20000')
    a('s_waitcnt lgkmcnt(0)')
    if ts and pt == 'kwait':
        a('s_memrealtime s[52:53]')
    nl = 0
    xidx = {}; gidx = {}; bidx = {}
    def gbloads():
        nonlocal nl
        for s in range(SL):
            a('buffer_load_ushort v%d, v%d, s[12:15], s%d offen offset:%d %s' % (G[s], vOffG, sGB, s*128, gbf))
            gidx[s] = nl; nl += 1
        for s in range(SL):
            r = Bf[s] + 4
            a('buffer_load_dwordx4 v[%d:%d], v%d, s[16:19], s%d offen offset:%d %s' % (r, r+3, vOffB, sGB, s*128, gbf))
            bidx[s] = nl; nl += 1
    nx = 0
    for s in range(SL):
        for q in range(4):
            if nx == gbpos:
                gbloads()
            r = X[s][q] + 4
            a('buffer_load_dwordx4 v[%d:%d], v%d, s[4:7], s%d offen offset:%d %s' % (r, r+3, vOffX, sOff[q], s*128, ldf))
            xidx[(s, q)] = nl; nl += 1; nx += 1
    if gbpos >= 12:
        gbloads()
    a('s_cmp_ge_u32 s%d, 4' % sW)
    a('s_cbranch_scc1 L_ib2')
    a('s_barrier')
    a('L_ib2:')
    a('s_mov_b32 s10, 37748736')
    a('s_mov_b32 s11, 0x20000')
    if pre:
        a('s_cmp_lg_u32 s%d, 0' % sP)
        a('s_cbranch_scc1 L_nopre')
        a('s_mov_b64 exec, 1')
        a('buffer_load_dword v0, v%d, s[8:11], s%d offen nt' % (vOffX, sOff[0] if pre == 1 else sOff[3]))
        a('s_mov_b64 exec, -1')
        a('L_nopre:')
    a('s_mov_b32 s%d, 0xffff0000' % sMask)
    a('s_lshl_b32 s40, s%d, 5' % sM)
    a('s_lshl_b32 s41, s%d, 2' % sP)
    a('s_add_u32 s41, s41, s40')
    a('v_mov_b32 v%d, s41' % vT[3])
    a('v_mov_b32 v%d, s40' % vT[1])
    a('v_mov_b32 v%d, 1' % (vF + 1))
    a('s_getreg_b32 s42, hwreg(HW_REG_XCC_ID)')
    a('s_and_b32 s42, s42, 1')
    a('s_cmp_ge_u32 s%d, %d' % (sM, nearly))
    a('s_cselect_b32 s43, 1, 0')
    a('s_and_b32 s34, s42, s43')
    a('s_andn2_b32 s35, s43, s42')
    def gatebar(reg, lab):
        a('s_cmp_eq_u32 s%d, 0' % reg)
        a('s_cbranch_scc1 %s' % lab)
        a('s_barrier')
        a('%s:' % lab)
    if gate_odd == 'early':
        gatebar(34, 'L_g0')
    if gate == 'early':
        gatebar(35, 'L_g1')
    state = {'first': True}
    def waitfor(i):
        a('s_waitcnt vmcnt(%d)' % (nl - 1 - i))
        if ts and pt == 'first' and state['first']:
            a('s_memrealtime s[52:53]')
        state['first'] = False
    def unpack8(dst, src):
        for k in range(4):
            a('v_lshlrev_b32 v%d, 16, v%d' % (dst + 2*k, src + k))
            a('v_and_b32 v%d, s%d, v%d' % (dst + 2*k + 1, sMask, src + k))
    def bcast(s):
        c = ACC[s]
        a('v_lshlrev_b32 v%d, 16, v%d' % (G[s], G[s]))
        a('v_mul_f32 v%d, v%d, v%d' % (c + 1, G[s], c))
        a('v_mov_b32 v%d, v%d' % (c, c + 1))
        a('v_mov_b32_dpp v%d, v%d row_ror:8 row_mask:0xf bank_mask:0xc' % (c, c))
        a('v_mov_b32_dpp v%d, v%d row_ror:8 row_mask:0xf bank_mask:0x3' % (c + 1, c + 1))
        for j in range(2):
            a('v_mov_b32 v%d, v%d' % (c + j + 2, c + j))
        for j in range(2):
            a('v_permlane16_swap_b32 v%d, v%d' % (c + j, c + j + 2))
        for j in range(4):
            a('v_mov_b32 v%d, v%d' % (c + j + 4, c + j))
        for j in range(4):
            a('v_permlane32_swap_b32 v%d, v%d' % (c + j, c + j + 4))
    gsum = vF
    gb_done = False
    for s in range(SL):
        for q in range(4):
            waitfor(xidx[(s, q)])
            if gate == 'x%d%d' % (s, q):
                gatebar(35, 'L_g1')
            if gate_odd == 'x%d%d' % (s, q):
                gatebar(34, 'L_g0')
            unpack8(X[s][q], X[s][q] + 4)
            for k in range(4):
                f = X[s][q] + 2*k; c = ACC[s] + 2*k
                if q == 0:
                    a('v_pk_mul_f32 v[%d:%d], v[%d:%d], v[%d:%d]' % (c, c+1, f, f+1, f, f+1))
                else:
                    a('v_pk_fma_f32 v[%d:%d], v[%d:%d], v[%d:%d], v[%d:%d]' % (c, c+1, f, f+1, f, f+1, c, c+1))
        c = ACC[s]
        for j in range(4):
            a('v_permlane32_swap_b32 v%d, v%d' % (c + j, c + j + 4))
        for j in range(4):
            a('v_add_f32 v%d, v%d, v%d' % (c + j, c + j, c + j + 4))
        for j in range(2):
            a('v_permlane16_swap_b32 v%d, v%d' % (c + j, c + j + 2))
        for j in range(2):
            a('v_add_f32 v%d, v%d, v%d' % (c + j, c + j, c + j + 2))
        a('v_add_f32_dpp v%d, v%d, v%d row_ror:8 row_mask:0xf bank_mask:0x3' % (c + 2, c, c))
        a('v_add_f32_dpp v%d, v%d, v%d row_ror:8 row_mask:0xf bank_mask:0xc' % (c + 2, c + 1, c + 1))
        a('v_sqrt_f32 v%d, v%d' % (c, c + 2))
        if s == 0:
            a('v_mov_b32 v%d, v%d' % (gsum, c))
        else:
            a('v_add_f32 v%d, v%d, v%d' % (gsum, gsum, c))
        if s < SL - 1:
            if bidx[SL-1] < xidx[(s + 1, 0)]:
                if not gb_done:
                    waitfor(bidx[SL-1])
                    for u in range(SL):
                        unpack8(Bf[u], Bf[u] + 4)
                    gb_done = True
                bcast(s)
    if ts and pt == 'loaded':
        a('s_memrealtime s[52:53]')
    t = gsum
    for sh in (8, 4, 2, 1):
        a('v_add_f32_dpp v%d, v%d, v%d row_ror:%d row_mask:0xf bank_mask:0xf' % (t, t, t, sh))
    a('v_add_f32_dpp v%d, v%d, v%d row_bcast:15 row_mask:0xa bank_mask:0xf' % (t, t, t))
    a('v_add_f32_dpp v%d, v%d, v%d row_bcast:31 row_mask:0xc bank_mask:0xf' % (t, t, t))
    a('s_mov_b32 exec_lo, 0')
    a('s_mov_b32 exec_hi, 0x80000000')
    a('ds_write_b32 v%d, v%d offset:16' % (vT[3], vF))
    a('ds_write_b32 v%d, v%d' % (vT[3], vF + 1))
    a('s_mov_b64 exec, -1')
    if gb_done:
        bcast(SL - 1)
    else:
        waitfor(bidx[SL-1])
        for s in range(SL):
            bcast(s)
        for u in range(SL):
            unpack8(Bf[u], Bf[u] + 4)
    a('L_poll:')
    a('ds_read_b96 v[%d:%d], v%d' % (TMP, TMP + 2, vT[1]))
    a('ds_read_b96 v[%d:%d], v%d offset:16' % (TMP + 4, TMP + 6, vT[1]))
    a('s_waitcnt lgkmcnt(0)')
    a('v_and_b32 v%d, v%d, v%d' % (vT[0], TMP, TMP + 1))
    a('v_and_b32 v%d, v%d, v%d' % (vT[0], vT[0], TMP + 2))
    a('v_cmp_eq_u32 vcc, 0, v%d' % vT[0])
    a('s_cbranch_vccnz L_poll')
    t = vT[0]
    a('v_add_f32 v%d, v%d, v%d' % (t, TMP + 4, TMP + 5))
    a('v_add_f32 v%d, v%d, v%d' % (t, t, TMP + 6))
    a('v_mul_f32 v%d, 0x3ae38e39, v%d' % (t, t))
    a('v_add_f32 v%d, 0x358637bd, v%d' % (t, t))
    a('v_rcp_f32 v%d, v%d' % (vR, t))
    if ts:
        a('s_memrealtime s[54:55]')
    for s in range(SL):
        c = ACC[s]
        for k in range(4):
            a('v_pk_fma_f32 v[%d:%d], v[%d:%d], v[%d:%d], 1.0 op_sel_hi:[1,0,0]' % (c+2*k, c+2*k+1, c+2*k, c+2*k+1, vR, vR+1))
    a('s_cmp_lg_u32 s43, 0')
    a('s_cbranch_scc1 L_g2')
    a('s_barrier')
    a('L_g2:')
    if ts and pt == 'go':
        a('s_memrealtime s[52:53]')
    order = [(s, q) for q in range(4) for s in range(SL)] if sorder == 'q' else [(s, q) for s in range(SL) for q in range(4)]
    for (s, q) in order:
        f = X[s][q]; c = ACC[s]; bb = Bf[s]
        for k in range(4):
            a('v_pk_fma_f32 v[%d:%d], v[%d:%d], v[%d:%d], v[%d:%d]' % (f+2*k, f+2*k+1, f+2*k, f+2*k+1, c+2*k, c+2*k+1, bb+2*k, bb+2*k+1))
        for k in range(4):
            a('v_cvt_pk_bf16_f32 v%d, v%d, v%d' % (f + k, f + 2*k, f + 2*k + 1))
        a('buffer_store_dwordx4 v[%d:%d], v%d, s[8:11], s%d offen offset:%d %s' % (f, f+3, vOffX, sOff[q], s*128, stf))
    if ts == 3:
        spin_tail(a, src, xcc)
    elif ts:
        tsblock(a, sW)
    a('L_end:')
    a('s_endpgm')
    launch = 'grid=(%d,1,1) block=(%d,1,1) lds=%d' % (NWG, NW * 64, 32 * NB)
    return wrap(a.text(), launch, nv, 80 if ts else 48,
                comment='GRN v3: 3 waves/batch, 4 batches/WG, f32-resident x, ld="%s" st="%s" gate=%s/%s' % (ldf, stf, gate, gate_odd))

if __name__ == '__main__':
    p = argparse.ArgumentParser()
    p.add_argument('--ld', default='nt'); p.add_argument('--st', default='sc1'); p.add_argument('--gb', default='')
    p.add_argument('--ts', type=int, default=0); p.add_argument('--gate', default='x13'); p.add_argument('--godd', default='early')
    p.add_argument('--nearly', type=int, default=2); p.add_argument('--nopf', action='store_true'); p.add_argument('--pt', default='loaded')
    p.add_argument('--sorder', default='q'); p.add_argument('--gbpos', type=int, default=4)
    p.add_argument('--src', type=int, default=58); p.add_argument('--xcc', type=int, default=None)
    p.add_argument('--pre', type=int, default=0)
    p.add_argument('-o', default='-')
    x = p.parse_args()
    x.ld = x.ld.replace('_', ' '); x.st = x.st.replace('_', ' ')
    s = gen(x.ld, x.st, x.gb, x.ts, x.gate, x.godd, x.nearly, not x.nopf, x.pt, x.sorder, x.gbpos, x.src, x.xcc, x.pre)
    open(x.o, 'w').write(s) if x.o != '-' else print(s)
```

```python
from asmlib import A

NWG, NW, SL = 256, 12, 3

def body():
    a = A()
    c = lambda s: a('; ' + s)
    vOffX, vOffB, vOffG = 1, 2, 3
    vT = [4, 5, 6, 7]
    nxt = 8
    X = [[0]*4 for _ in range(SL)]
    for s in range(SL):
        for q in range(4):
            X[s][q] = nxt; nxt += 8
    ACC = [nxt + 8*s for s in range(SL)]; nxt += 8*SL
    Bf = [nxt + 8*s for s in range(SL)]; nxt += 8*SL
    G = [nxt + s for s in range(SL)]; nxt += SL
    nxt += nxt % 2
    vR = nxt; nxt += 2
    vF = nxt; nxt += 2
    TMP = nxt; nxt += 7
    nv = nxt
    sOff = [20, 21, 22, 23]
    sGB, sW, sP, sM, sMask = 24, 25, 26, 27, 30

    c('---- kernarg pointers straight into the descriptor slots: x s[4:5], out s[8:9], g s[12:13], b s[16:17]')
    a('s_load_dwordx2 s[4:5], s[0:1], 0')
    a('s_load_dwordx2 s[12:13], s[0:1], 8')
    a('s_load_dwordx2 s[16:17], s[0:1], 16')
    a('s_load_dwordx2 s[8:9], s[0:1], 24')
    a('s_cmp_ge_u32 s2, %d' % NWG)
    a('s_cbranch_scc1 L_end')
    a('v_readfirstlane_b32 s%d, v0' % sW)
    a('s_lshr_b32 s%d, s%d, 6' % (sW, sW))
    c('wave 4 clears the LDS hand-off area (per batch 32 bytes: 3 flags, pad, 3 partial sums, pad); the init barrier orders this before any use')
    a('s_cmp_lg_u32 s%d, 4' % sW)
    a('s_cbranch_scc1 L_noz')
    a('v_and_b32 v%d, 15, v0' % vT[3])
    a('v_lshlrev_b32 v%d, 3, v%d' % (vT[3], vT[3]))
    a('v_mov_b32 v%d, 0' % vF)
    a('v_mov_b32 v%d, 0' % (vF + 1))
    a('ds_write_b64 v%d, v[%d:%d]' % (vT[3], vF, vF + 1))
    a('s_waitcnt lgkmcnt(0)')
    a('L_noz:')
    c('lane l: row r = (l>>3)&7 of a row group, 16-byte chunk (l&7) of a 128-byte column slab')
    c('v1 = r*1152 + chunk*16 (x/out), v2 = chunk*16 (b), v3 = v2 + 2*r (g, one column per lane); m = w/3 batch, part = w%3')
    a('v_and_b32 v%d, 7, v0' % vT[2])
    a('v_bfe_u32 v%d, v0, 3, 3' % vT[1])
    a('v_lshlrev_b32 v%d, 4, v%d' % (vOffB, vT[2]))
    a('s_mul_i32 s%d, s%d, 43' % (sM, sW))
    a('v_mul_u32_u24 v%d, 1152, v%d' % (vOffX, vT[1]))
    a('s_lshr_b32 s%d, s%d, 7' % (sM, sM))
    a('v_add_u32 v%d, v%d, v%d' % (vOffX, vOffX, vOffB))
    a('s_mul_i32 s%d, s%d, 3' % (sP, sM))
    a('v_lshl_add_u32 v%d, v%d, 1, v%d' % (vOffG, vT[1], vOffB))
    a('s_sub_u32 s%d, s%d, s%d' % (sP, sW, sP))
    c('wave 0 pulls the rest of this kernel code into L2 (one lane per 128-byte line, result unused)')
    a('s_cmp_lg_u32 s%d, 0' % sW)
    a('s_cbranch_scc1 L_nopf')
    a('s_getpc_b64 s[32:33]')
    a('L_pc:')
    a('v_lshlrev_b32 v0, 7, v0')
    a('v_min_u32 v0, L_end-L_pc, v0')
    a('global_load_dword v0, v0, s[32:33]')
    a('L_nopf:')
    c('init barrier: waves 4..11 arrive before their loads, waves 0..3 after theirs (costs nothing: younger waves queue behind)')
    a('s_cmp_lt_u32 s%d, 4' % sW)
    a('s_cbranch_scc1 L_ib1')
    a('s_barrier')
    a('L_ib1:')
    c('batch = (wg&7)*128 + (wg>>3) + 32*m : workgroups that share a die stream one contiguous range')
    a('s_and_b32 s%d, s2, 7' % sOff[0])
    a('s_lshl_b32 s%d, s%d, 7' % (sOff[0], sOff[0]))
    a('s_lshr_b32 s31, s2, 3')
    a('s_add_u32 s%d, s%d, s31' % (sOff[0], sOff[0]))
    a('s_lshl_b32 s31, s%d, 5' % sM)
    a('s_add_u32 s%d, s%d, s31' % (sOff[0], sOff[0]))
    a('s_mul_i32 s%d, s%d, 36864' % (sOff[0], sOff[0]))
    a('s_mul_i32 s%d, s%d, 384' % (sGB, sP))
    a('s_mov_b32 s6, 37748736')
    a('s_add_u32 s%d, s%d, s%d' % (sOff[0], sOff[0], sGB))
    a('s_mov_b32 s7, 0x20000')
    for q in range(1, 4):
        a('s_add_u32 s%d, s%d, %d' % (sOff[q], sOff[0], q * 9216))
    a('s_mov_b32 s14, 1152')
    a('s_mov_b32 s15, 0x20000')
    a('s_mov_b32 s18, 1152')
    a('s_mov_b32 s19, 0x20000')
    a('s_waitcnt lgkmcnt(0)')
    c('---- all loads of this wave: slab 0 (4 row groups), g, b, slab 1, slab 2')
    nl = 0
    xidx, gidx, bidx = {}, {}, {}
    for s in range(SL):
        if s == 1:
            for u in range(SL):
                a('buffer_load_ushort v%d, v%d, s[12:15], s%d offen offset:%d' % (G[u], vOffG, sGB, u*128))
                gidx[u] = nl; nl += 1
            for u in range(SL):
                r = Bf[u] + 4
                a('buffer_load_dwordx4 v[%d:%d], v%d, s[16:19], s%d offen offset:%d' % (r, r+3, vOffB, sGB, u*128))
                bidx[u] = nl; nl += 1
        for q in range(4):
            r = X[s][q] + 4
            a('buffer_load_dwordx4 v[%d:%d], v%d, s[4:7], s%d offen offset:%d nt' % (r, r+3, vOffX, sOff[q], s*128))
            xidx[(s, q)] = nl; nl += 1
    a('s_cmp_ge_u32 s%d, 4' % sW)
    a('s_cbranch_scc1 L_ib2')
    a('s_barrier')
    a('L_ib2:')
    a('s_mov_b32 s10, 37748736')
    a('s_mov_b32 s11, 0x20000')
    a('s_mov_b32 s%d, 0xffff0000' % sMask)
    a('s_lshl_b32 s40, s%d, 5' % sM)
    a('s_lshl_b32 s41, s%d, 2' % sP)
    a('s_add_u32 s41, s41, s40')
    a('v_mov_b32 v%d, s41' % vT[3])
    a('v_mov_b32 v%d, s40' % vT[1])
    a('v_mov_b32 v%d, 1' % (vF + 1))
    c('store gate: batches 0,1 hold their stores until the reads of batches 2,3 are (nearly) through.')
    c('waves of batches 2,3 pass the gate barrier right here on odd dies, after their second slab landed on even dies (speed only)')
    a('s_getreg_b32 s42, hwreg(HW_REG_XCC_ID)')
    a('s_and_b32 s42, s42, 1')
    a('s_cmp_ge_u32 s%d, 2' % sM)
    a('s_cselect_b32 s43, 1, 0')
    a('s_and_b32 s34, s42, s43')
    a('s_andn2_b32 s35, s43, s42')
    def gatebar(reg, lab):
        a('s_cmp_eq_u32 s%d, 0' % reg)
        a('s_cbranch_scc1 %s' % lab)
        a('s_barrier')
        a('%s:' % lab)
    gatebar(34, 'L_g0')
    waitfor = lambda i: a('s_waitcnt vmcnt(%d)' % (nl - 1 - i))
    def unpack8(dst, src):
        for k in range(4):
            a('v_lshlrev_b32 v%d, 16, v%d' % (dst + 2*k, src + k))
            a('v_and_b32 v%d, s%d, v%d' % (dst + 2*k + 1, sMask, src + k))
    def bcast(s):
        r = ACC[s]
        c('p = g*gx, then spread the 64 per-lane columns back to the x layout (8 columns per lane)')
        a('v_lshlrev_b32 v%d, 16, v%d' % (G[s], G[s]))
        a('v_mul_f32 v%d, v%d, v%d' % (r + 1, G[s], r))
        a('v_mov_b32 v%d, v%d' % (r, r + 1))
        a('v_mov_b32_dpp v%d, v%d row_ror:8 row_mask:0xf bank_mask:0xc' % (r, r))
        a('v_mov_b32_dpp v%d, v%d row_ror:8 row_mask:0xf bank_mask:0x3' % (r + 1, r + 1))
        for j in range(2):
            a('v_mov_b32 v%d, v%d' % (r + j + 2, r + j))
        for j in range(2):
            a('v_permlane16_swap_b32 v%d, v%d' % (r + j, r + j + 2))
        for j in range(4):
            a('v_mov_b32 v%d, v%d' % (r + j + 4, r + j))
        for j in range(4):
            a('v_permlane32_swap_b32 v%d, v%d' % (r + j, r + j + 4))
    gsum = vF
    for s in range(SL):
        c('---- slab %d: bf16 -> f32 (kept), per-lane sums of squares over the 4 row groups' % s)
        for q in range(4):
            waitfor(xidx[(s, q)])
            if (s, q) == (1, 3):
                gatebar(35, 'L_g1')
            unpack8(X[s][q], X[s][q] + 4)
            for k in range(4):
                f = X[s][q] + 2*k; r = ACC[s] + 2*k
                if q == 0:
                    a('v_pk_mul_f32 v[%d:%d], v[%d:%d], v[%d:%d]' % (r, r+1, f, f+1, f, f+1))
                else:
                    a('v_pk_fma_f32 v[%d:%d], v[%d:%d], v[%d:%d], v[%d:%d]' % (r, r+1, f, f+1, f, f+1, r, r+1))
        c('reduce-scatter over the 8 rows held by lane bits 5,4,3: lane l ends with column 8*(l&7) + (l>>3); gx = sqrt')
        r = ACC[s]
        for j in range(4):
            a('v_permlane32_swap_b32 v%d, v%d' % (r + j, r + j + 4))
        for j in range(4):
            a('v_add_f32 v%d, v%d, v%d' % (r + j, r + j, r + j + 4))
        for j in range(2):
            a('v_permlane16_swap_b32 v%d, v%d' % (r + j, r + j + 2))
        for j in range(2):
            a('v_add_f32 v%d, v%d, v%d' % (r + j, r + j, r + j + 2))
        a('v_add_f32_dpp v%d, v%d, v%d row_ror:8 row_mask:0xf bank_mask:0x3' % (r + 2, r, r))
        a('v_add_f32_dpp v%d, v%d, v%d row_ror:8 row_mask:0xf bank_mask:0xc' % (r + 2, r + 1, r + 1))
        a('v_sqrt_f32 v%d, v%d' % (r, r + 2))
        if s == 0:
            a('v_mov_b32 v%d, v%d' % (gsum, r))
        else:
            a('v_add_f32 v%d, v%d, v%d' % (gsum, gsum, r))
        if s == 0:
            waitfor(bidx[SL-1])
            c('b -> f32 in the x layout')
            for u in range(SL):
                unpack8(Bf[u], Bf[u] + 4)
        if s < SL - 1:
            bcast(s)
    c('---- sum of gx over this wave (192 columns) -> lane 63 -> LDS: the sum first, then its flag (LDS keeps the order of one wave)')
    t = gsum
    for sh in (8, 4, 2, 1):
        a('v_add_f32_dpp v%d, v%d, v%d row_ror:%d row_mask:0xf bank_mask:0xf' % (t, t, t, sh))
    a('v_add_f32_dpp v%d, v%d, v%d row_bcast:15 row_mask:0xa bank_mask:0xf' % (t, t, t))
    a('v_add_f32_dpp v%d, v%d, v%d row_bcast:31 row_mask:0xc bank_mask:0xf' % (t, t, t))
    a('s_mov_b32 exec_lo, 0')
    a('s_mov_b32 exec_hi, 0x80000000')
    a('ds_write_b32 v%d, v%d offset:16' % (vT[3], vF))
    a('ds_write_b32 v%d, v%d' % (vT[3], vF + 1))
    a('s_mov_b64 exec, -1')
    bcast(SL - 1)
    c('wait for the three column parts of this batch: flags are read before the sums, every lane must have seen all three flags')
    a('L_poll:')
    a('ds_read_b96 v[%d:%d], v%d' % (TMP, TMP + 2, vT[1]))
    a('ds_read_b96 v[%d:%d], v%d offset:16' % (TMP + 4, TMP + 6, vT[1]))
    a('s_waitcnt lgkmcnt(0)')
    a('v_and_b32 v%d, v%d, v%d' % (vT[0], TMP, TMP + 1))
    a('v_and_b32 v%d, v%d, v%d' % (vT[0], vT[0], TMP + 2))
    a('v_cmp_eq_u32 vcc, 0, v%d' % vT[0])
    a('s_cbranch_vccnz L_poll')
    c('r = 1 / (mean(gx) + 1e-6);  scale = g*gx*r + 1')
    t = vT[0]
    a('v_add_f32 v%d, v%d, v%d' % (t, TMP + 4, TMP + 5))
    a('v_add_f32 v%d, v%d, v%d' % (t, t, TMP + 6))
    a('v_mul_f32 v%d, 0x3ae38e39, v%d' % (t, t))
    a('v_add_f32 v%d, 0x358637bd, v%d' % (t, t))
    a('v_rcp_f32 v%d, v%d' % (vR, t))
    for s in range(SL):
        r = ACC[s]
        for k in range(4):
            a('v_pk_fma_f32 v[%d:%d], v[%d:%d], v[%d:%d], 1.0 op_sel_hi:[1,0,0]' % (r+2*k, r+2*k+1, r+2*k, r+2*k+1, vR, vR+1))
    c('store gate for batches 0,1')
    a('s_cmp_lg_u32 s43, 0')
    a('s_cbranch_scc1 L_g2')
    a('s_barrier')
    a('L_g2:')
    c('---- out = x*scale + b, rounded to bf16, written through')
    for q in range(4):
        for s in range(SL):
            f = X[s][q]; r = ACC[s]; bb = Bf[s]
            for k in range(4):
                a('v_pk_fma_f32 v[%d:%d], v[%d:%d], v[%d:%d], v[%d:%d]' % (f+2*k, f+2*k+1, f+2*k, f+2*k+1, r+2*k, r+2*k+1, bb+2*k, bb+2*k+1))
            for k in range(4):
                a('v_cvt_pk_bf16_f32 v%d, v%d, v%d' % (f + k, f + 2*k, f + 2*k + 1))
            a('buffer_store_dwordx4 v[%d:%d], v%d, s[8:11], s%d offen offset:%d sc1' % (f, f+3, vOffX, sOff[q], s*128))
    a('L_end:')
    a('s_endpgm')
    return a.text(), nv

HEAD = """; GRN (global response normalisation): out = x * (g * gx / (mean_d(gx) + 1e-6) + 1) + b,  gx[d] = sqrt(sum_s x[s][d]^2)
; @launch grid=(256,1,1) block=(768,1,1) lds=128
"""

def main():
    txt, nv = body()
    name = 'standalone__grn__sampling_kernel'
    s = HEAD
    s += '.amdgcn_target "amdgcn-amd-amdhsa--gfx950"\n.text\n'
    s += '.globl %s\n.p2align 8\n.type %s,@function\n%s:\n' % (name, name, name)
    s += txt
    s += '.section .rodata,"a"\n.p2align 6\n.amdhsa_kernel %s\n' % name
    s += '  .amdhsa_next_free_vgpr %d\n  .amdhsa_next_free_sgpr 48\n  .amdhsa_accum_offset %d\n' % (nv, (nv + 3)//4*4)
    s += '  .amdhsa_group_segment_fixed_size 0\n  .amdhsa_kernarg_size 48\n  .amdhsa_user_sgpr_count 2\n'
    s += '  .amdhsa_user_sgpr_kernarg_segment_ptr 1\n  .amdhsa_system_sgpr_workgroup_id_x 1\n'
    s += '  .amdhsa_float_denorm_mode_32 3\n.end_amdhsa_kernel\n'
    return s

if __name__ == '__main__':
    import sys
    open(sys.argv[1], 'w').write(main())
```
